```python
import torch

def _softmax(x, axis=-1):
    return torch.softmax(x, dim=axis)
def _gelu(x):
    return torch.nn.functional.gelu(x, approximate="tanh")
def _silu(x):
    return torch.nn.functional.silu(x)
def _sigmoid(x):
    return torch.sigmoid(x)
def _layernorm(x, axis=-1, eps=1e-5):
    m = x.mean(dim=axis, keepdim=True)
    v = x.var(dim=axis, keepdim=True, unbiased=False)
    return (x - m) / torch.sqrt(v + eps)
def _scatter_add(tgt, idx, src, axis=0):
    return tgt.clone().index_add_(axis, idx, src)
def _segment_sum(src, seg, n):
    out = torch.zeros((n,) + src.shape[1:], dtype=src.dtype)
    return out.index_add_(0, seg, src)
def _pad(x, pw):
    flat = tuple(v for pair in reversed(pw) for v in pair)
    return torch.nn.functional.pad(x, flat)

kernel_name = 'gated_mix__compressed_kv_cla__mixer_s_mlp__prompt'

def setup_inputs():

    _w = (lambda a: (lambda t: t.to(torch.bfloat16) if t.is_floating_point() else t)(torch.as_tensor(a)))
    def _A_setup():
        B, H, Sq, Sk, D, M = 1, 16, 2048, 2048, 256, 448
        Dc = 4 * D
        return {
            "x": _w((lambda *s: torch.randn(*s, dtype=torch.bfloat16) * 0.05)(B, Sq, M)),
            "c_kv": _w((lambda *s: torch.randn(*s, dtype=torch.bfloat16) * 1.6)(B, Sk, Dc)),
            "w_q": _w((lambda *s: torch.randn(*s, dtype=torch.bfloat16) * 6.4)(M, H, D) * (M ** -0.5)),
            "w_uk": _w((lambda *s: torch.randn(*s, dtype=torch.bfloat16) * 6.4)(Dc, H, D) * (Dc ** -0.5)),
            "w_uv": _w((lambda *s: torch.randn(*s, dtype=torch.bfloat16) * 1.6)(Dc, H, D) * (Dc ** -0.5)),
            "w_o": _w((lambda *s: torch.randn(*s, dtype=torch.bfloat16) * 1.6)(H, D, M) * ((H * D) ** -0.5)),
        }
    _A_in = _A_setup()

    def _B_setup():
        B, S, D, F = 1, 2048, 448, 1792
        return {
            "x":  _w((lambda *s: torch.randn(*s, dtype=torch.bfloat16) * 0.05)(B, S, D)),
            "w1": _w((lambda *s: torch.randn(*s, dtype=torch.bfloat16) * 3.2)(D, D) * (D ** -0.5)),
            "w2": _w((lambda *s: torch.randn(*s, dtype=torch.bfloat16) * 3.2)(D, D) * (D ** -0.5)),
            "w3": _w((lambda *s: torch.randn(*s, dtype=torch.bfloat16) * 3.2)(D, F) * (D ** -0.5)),
            "w4": _w((lambda *s: torch.randn(*s, dtype=torch.bfloat16) * 1.6)(F, D) * (F ** -0.5)),
        }
    _B_in = _B_setup()

    return {
        "A_x": _A_in["x"],
        "A_c_kv": _A_in["c_kv"],
        "A_w_q": _A_in["w_q"],
        "A_w_uk": _A_in["w_uk"],
        "A_w_uv": _A_in["w_uv"],
        "A_w_o": _A_in["w_o"],
        "B_x": _B_in["x"],
        "B_w1": _B_in["w1"],
        "B_w2": _B_in["w2"],
        "B_w3": _B_in["w3"],
        "B_w4": _B_in["w4"],
        "gate_w": _w((lambda *s: torch.randn(*s, dtype=torch.bfloat16) * 0.05)(448) * 16.0),
    }

def reference(A_x, A_c_kv, A_w_q, A_w_uk, A_w_uv, A_w_o, B_x, B_w1, B_w2, B_w3, B_w4, gate_w):
    def _A_ref(x, c_kv, w_q, w_uk, w_uv, w_o):
        B, Sq, M = x.shape[0], x.shape[1], x.shape[2]
        Sk = c_kv.shape[1]
        H, D = w_q.shape[1], w_q.shape[2]
        q = torch.einsum("bqm,mhd->bhqd", x, w_q)
        k = torch.einsum("bkc,chd->bhkd", c_kv, w_uk)
        v = torch.einsum("bkc,chd->bhkd", c_kv, w_uv)
        scores = torch.einsum("bhqd,bhkd->bhqk", q, k) * (D ** -0.5)
        off = Sk - Sq
        qi = torch.arange(Sq)[:, None]
        kj = torch.arange(Sk)[None, :]
        cmask = kj <= (qi + off)
        scores = torch.where(cmask[None, None], scores, -1e9)
        p = _softmax(scores, axis=-1)
        ctx = torch.einsum("bhqk,bhkd->bhqd", p, v)
        return torch.einsum("bhqd,hdm->bqm", ctx, w_o)

    def _B_ref(x, w1, w2, w3, w4):
        B, S, D = x.shape
        h = _gelu(_layernorm(x, axis=-1) @ w1)
        c = D // 4
        g0 = _pad(h[:, :, 0*c:1*c], ((0, 0), (1, 0), (0, 0)))[:, :S, :]
        g1 = _pad(h[:, :, 1*c:2*c], ((0, 0), (0, 1), (0, 0)))[:, 1:, :]
        g2 = _pad(h[:, :, 2*c:3*c], ((0, 0), (2, 0), (0, 0)))[:, :S, :]
        g3 = _pad(h[:, :, 3*c:   ], ((0, 0), (0, 2), (0, 0)))[:, 2:, :]
        hs = torch.concatenate([g0, g1, g2, g3], axis=-1) @ w2
        x1 = x + hs
        h2 = _gelu(_layernorm(x1, axis=-1) @ w3) @ w4
        return x1 + h2

    x = A_x
    g = _sigmoid((x * gate_w).sum(-1, keepdims=True))
    a = _A_ref(x, A_c_kv, A_w_q, A_w_uk, A_w_uv, A_w_o)
    b = _B_ref(x, B_w1, B_w2, B_w3, B_w4)
    return g * a + (1 - g) * b
```

```python
import re

REG_RE = re.compile(r'^(-|neg\()?(abs\(|\|)?([vas])(\d+|\[(\d+):(\d+)\])[\)\|]*$')

def parse_reg(tok):
    t = tok.strip()
    if t in ('vcc',): return ['vcc_lo', 'vcc_hi']
    if t in ('vcc_lo', 'vcc_hi', 'm0', 'exec_lo', 'exec_hi'): return [t]
    if t == 'exec': return ['exec_lo', 'exec_hi']
    m = REG_RE.match(t)
    if not m: return []
    k = m.group(3)
    if m.group(5) is not None:
        return [f'{k}{i}' for i in range(int(m.group(5)), int(m.group(6)) + 1)]
    return [f'{k}{int(m.group(4))}']

TRANS = ('v_exp_f32', 'v_log_f32', 'v_rcp_f32', 'v_rsq_f32', 'v_sqrt_f32', 'v_sin_f32', 'v_cos_f32',
         'v_rcp_iflag_f32', 'v_exp_f16', 'v_rcp_f16')
DPP_RE = re.compile(r'\b(quad_perm|row_shl|row_shr|row_ror|wave_shl|wave_shr|wave_rol|wave_ror|row_mirror|row_half_mirror|row_bcast|row_newbcast)\b')

class Inst:
    __slots__ = ('text', 'op', 'dst', 'src', 'kind', 'passes', 'srcC', 'srcAB', 'cnt', 'tags', 'waits',
                 'target', 'is_label', 'name', 'dpp', 'trans', 'store_data', 'nstates', 'comment', 'opsel', 'rdlane', 'permlane', 'lds_dma', 'sgpr_vsrc')
    def __init__(self):
        self.text = ''; self.op = ''; self.dst = []; self.src = []; self.kind = ''
        self.passes = 0; self.srcC = []; self.srcAB = []; self.cnt = None; self.tags = []; self.waits = []
        self.target = None; self.is_label = False; self.name = None; self.dpp = False; self.trans = False
        self.store_data = []; self.nstates = 1; self.comment = ''; self.opsel = False
        self.rdlane = False; self.permlane = False; self.lds_dma = False

def split_ops(s):
    out = []; depth = 0; cur = ''
    for ch in s:
        if ch in '[(': depth += 1
        if ch in '])': depth -= 1
        if ch == ',' and depth == 0:
            out.append(cur.strip()); cur = ''
        else:
            cur += ch
    if cur.strip(): out.append(cur.strip())
    return out

def parse_inst(text):
    ins = Inst()
    ins.text = text
    t = text.strip()
    parts = t.split(None, 1)
    op = parts[0]
    rest = parts[1] if len(parts) > 1 else ''
    base = re.sub(r'_(e32|e64|dpp|sdwa)$', '', op)
    ins.op = base
    ops = split_ops(rest)
    mods = ''
    if ops:
        last = ops[-1].split(None, 1)
        ops[-1] = last[0]
        mods = last[1] if len(last) > 1 else ''
    R = [parse_reg(o) for o in ops]
    flat = lambda L: [r for x in L for r in x]
    if base.startswith('v_mfma'):
        ins.kind = 'mfma'
        ins.dst = R[0]; ins.srcAB = R[1] + R[2]; ins.srcC = R[3]; ins.src = ins.srcAB + ins.srcC
        if '32x32x16' in base and ('bf16' in base or 'f16' in base): ins.passes = 8
        elif '16x16x32' in base and ('bf16' in base or 'f16' in base): ins.passes = 4
        else: raise ValueError('unknown mfma ' + base)
    elif base.startswith('v_'):
        ins.kind = 'valu'
        ins.dpp = bool(DPP_RE.search(mods)) or op.endswith('_dpp')
        ins.trans = base in TRANS
        ins.opsel = ('op_sel' in mods and not base.startswith('v_pk_')) or 'dst_sel' in mods
        if base.startswith('v_cmpx'):
            ins.dst = R[0] + ['exec_lo', 'exec_hi']; ins.src = flat(R[1:])
        elif base.startswith('v_cmp'):
            ins.dst = R[0]; ins.src = flat(R[1:])
        elif base in ('v_readfirstlane_b32', 'v_readlane_b32'):
            ins.dst = R[0]; ins.src = flat(R[1:]); ins.rdlane = True
        elif base == 'v_writelane_b32':
            ins.dst = R[0]; ins.src = flat(R[1:]) + R[0]
        elif base.startswith('v_permlane'):
            ins.dst = R[0] + R[1]; ins.src = R[0] + R[1]; ins.permlane = True
        elif base in ('v_add_co_u32', 'v_sub_co_u32', 'v_subrev_co_u32', 'v_addc_co_u32', 'v_subb_co_u32', 'v_mad_u64_u32', 'v_div_scale_f32'):
            ins.dst = R[0] + R[1]; ins.src = flat(R[2:])
        elif base in ('v_fmac_f32', 'v_pk_fmac_f16', 'v_dot2c_f32_bf16', 'v_dot2c_f32_f16', 'v_fmac_f16'):
            ins.dst = R[0]; ins.src = flat(R[1:]) + R[0]
        elif base == 'v_nop':
            pass
        else:
            ins.dst = R[0]; ins.src = flat(R[1:])
            if ins.dpp or ins.opsel: ins.src = ins.src + R[0]
            if base == 'v_cndmask_b32' and len(ops) == 3: ins.src += ['vcc_lo', 'vcc_hi']
            if base == 'v_div_fmas_f32': ins.src += ['vcc_lo', 'vcc_hi']
    elif base.startswith('ds_'):
        ins.kind = 'ds'; ins.cnt = 'lgkm'
        if base.startswith('ds_read') or base.startswith('ds_bpermute') or base.startswith('ds_permute') or base.startswith('ds_swizzle') or '_rtn' in base:
            ins.dst = R[0]; ins.src = flat(R[1:])
        else:
            ins.src = flat(R)
    elif base.startswith('buffer_') or base.startswith('global_'):
        ins.kind = 'vmem'; ins.cnt = 'vm'
        allmods = ' ' + mods + ' '
        if base in ('buffer_wbl2', 'buffer_inv'):
            pass
        elif base.startswith('buffer_load') and ' lds ' in allmods:
            ins.src = flat(R) + ['m0']; ins.lds_dma = True
        elif base.startswith('global_load_lds'):
            ins.src = flat(R) + ['m0']; ins.lds_dma = True
        elif '_load' in base:
            ins.dst = R[0]; ins.src = flat(R[1:])
        elif 'atomic' in base:
            if ' sc0 ' in allmods:
                if base.startswith('buffer_'):
                    ins.dst = R[0]; ins.src = flat(R)
                else:
                    ins.dst = R[0]; ins.src = flat(R[1:])
            else:
                ins.src = flat(R)
        else:
            ins.src = flat(R)
            if base.endswith('x3') or base.endswith('x4'):
                ins.store_data = R[0] if base.startswith('buffer_') else R[1]
    elif base.startswith('s_load') or base.startswith('s_buffer_load') or base in ('s_memtime', 's_memrealtime'):
        ins.kind = 'smem'; ins.cnt = 'lgkm'
        ins.dst = R[0]; ins.src = flat(R[1:])
    elif base == 's_waitcnt':
        ins.kind = 'waitcnt'
    elif base == 's_nop':
        ins.kind = 'nop'; ins.nstates = int(ops[0], 0) + 1
    elif base in ('s_barrier', 's_setprio', 's_sleep', 's_endpgm', 's_sethalt', 's_setreg_imm32_b32', 's_ttracedata'):
        ins.kind = 'misc'
    elif base == 's_branch' or base.startswith('s_cbranch'):
        ins.kind = 'branch'; ins.target = ops[0]
        if 'vcc' in base: ins.src = ['vcc_lo', 'vcc_hi']
        if 'exec' in base: ins.src = ['exec_lo', 'exec_hi']
    elif base.startswith('s_cmp') or base.startswith('s_bitcmp'):
        ins.kind = 'salu'; ins.src = flat(R)
    elif base.startswith('s_'):
        ins.kind = 'salu'
        ins.dst = R[0]; ins.src = flat(R[1:])
        if 'saveexec' in base:
            ins.dst = ins.dst + ['exec_lo', 'exec_hi']; ins.src += ['exec_lo', 'exec_hi']
        if base in ('s_addk_i32', 's_mulk_i32', 's_cmov_b32', 's_cmov_b64', 's_cmovk_i32'): ins.src += R[0]
    else:
        raise ValueError('cannot classify: ' + text)
    return ins

WAIT_RE = re.compile(r'(vmcnt|lgkmcnt|expcnt)\((\d+)\)')
MAXC = {'vm': 63, 'lgkm': 15}

class Kernel:
    def __init__(self, name):
        self.name = name
        self.items = []
        self._lbl = 0
    def I(self, text, tag=None, comment=''):
        ins = parse_inst(text)
        if tag is not None:
            ins.tags = [tag] if isinstance(tag, str) else list(tag)
        ins.comment = comment
        self.items.append(ins)
        return ins
    def __call__(self, text, tag=None):
        for line in text.strip().split('\n'):
            line = line.split(';')[0].strip()
            if not line: continue
            if line.endswith(':'):
                self.label(line[:-1])
            else:
                self.I(line, tag=tag)
    def add(self, ins):
        self.items.append(ins)
    def label(self, name):
        ins = Inst(); ins.is_label = True; ins.name = name; ins.kind = 'label'; ins.nstates = 0
        self.items.append(ins)
    def newlabel(self, stem='L'):
        self._lbl += 1
        return f'{self.name}_{stem}{self._lbl}'
    def wait(self, *tags):
        ins = Inst(); ins.kind = 'waittag'; ins.waits = list(tags); ins.nstates = 0
        self.items.append(ins)
    def raw(self, text):
        ins = Inst(); ins.kind = 'raw'; ins.text = text; ins.nstates = 0
        self.items.append(ins)

    def _cfg(self, items):
        lab = {it.name: i for i, it in enumerate(items) if it.is_label}
        succ = [[] for _ in items]
        for i, it in enumerate(items):
            if it.kind == 'branch':
                succ[i].append(lab[it.target])
                if it.op != 's_branch' and i + 1 < len(items): succ[i].append(i + 1)
            elif it.op == 's_endpgm':
                pass
            elif i + 1 < len(items):
                succ[i].append(i + 1)
        pred = [[] for _ in items]
        for i, s in enumerate(succ):
            for j in s: pred[j].append(i)
        return succ, pred

    def insert_waits(self):
        items = self.items
        succ, pred = self._cfg(items)
        n = len(items)
        instate = [None] * n
        instate[0] = {}
        need = [None] * n
        work = [0]
        inwork = {0}
        def transfer(i, st):
            it = items[i]
            st = dict(st)
            req = {}
            def require(key):
                if key in st:
                    c, age, smem = st[key]
                    if c == 'lgkm' and any(v[2] for v in st.values()): age = 0
                    age = min(age, MAXC[c])
                    req[c] = min(req.get(c, 99), age)
            if it.kind == 'waittag':
                for t in it.waits: require('#' + t)
            elif it.kind == 'waitcnt':
                for m in WAIT_RE.finditer(it.text):
                    c = {'vmcnt': 'vm', 'lgkmcnt': 'lgkm'}.get(m.group(1))
                    if c is None: continue
                    N = int(m.group(2))
                    anysm = any(v[2] for v in st.values())
                    for k in list(st):
                        if st[k][0] == c and (st[k][1] >= N and not (c == 'lgkm' and anysm and N > 0)): del st[k]
            else:
                for r in it.src: require(r)
                for r in it.dst:
                    if r in st:
                        c, age, smem = st[r]
                        if it.cnt == c and not smem and it.kind != 'smem': continue
                        require(r)
            for c, N in req.items():
                for k in list(st):
                    if st[k][0] == c and st[k][1] >= N: del st[k]
            if it.cnt:
                for k in list(st):
                    if st[k][0] == it.cnt:
                        c, age, smem = st[k]
                        if age + 1 > 80 and not smem:
                            age = 79
                        st[k] = (c, age + 1, smem)
                for r in it.dst: st[r] = (it.cnt, 0, it.kind == 'smem')
                for t in it.tags: st['#' + t] = (it.cnt, 0, it.kind == 'smem')
            return st, req
        while work:
            i = work.pop(); inwork.discard(i)
            out, req = transfer(i, instate[i])
            need[i] = req
            for j in succ[i]:
                if instate[j] is None:
                    instate[j] = dict(out); changed = True
                else:
                    changed = False
                    cur = instate[j]
                    for k, v in out.items():
                        if k not in cur:
                            cur[k] = v; changed = True
                        else:
                            a = cur[k]
                            if a[0] != v[0]:
                                raise ValueError(f'reg {k} pending on two counters at item {j}: {items[j].text}')
                            if v[1] < a[1] or (v[2] and not a[2]):
                                cur[k] = (a[0], min(a[1], v[1]), a[2] or v[2]); changed = True
                if changed and j not in inwork:
                    work.append(j); inwork.add(j)
        new = []
        for i, it in enumerate(items):
            req = need[i]
            if req:
                s = 's_waitcnt'
                if 'vm' in req: s += f' vmcnt({req["vm"]})'
                if 'lgkm' in req: s += f' lgkmcnt({req["lgkm"]})'
                w = parse_inst(s); w.comment = 'auto'
                new.append(w)
            if it.kind != 'waittag': new.append(it)
        self.items = new

    def _hazard_need(self, prod, cons):
        need = 0
        pd = set(prod.dst)
        if prod.kind == 'valu':
            vd = {r for r in pd if r[0] in 'va' and r not in ('vcc_lo', 'vcc_hi')}
            sd = pd - vd
            if cons.kind == 'mfma':
                if vd & set(cons.src): need = max(need, 2)
                if sd & {'exec_lo', 'exec_hi'}: need = max(need, 4)
            if prod.op.startswith('v_dot') and cons.kind in ('valu', 'mfma', 'vmem', 'ds'):
                if vd & (set(cons.src) | set(cons.dst)):
                    same_c = cons.op == prod.op and not (vd & set(cons.src[:-len(cons.dst)] if cons.dst else cons.src))
                    if not same_c: need = max(need, 3)
            if cons.kind == 'valu':
                cs = set(cons.src)
                if prod.trans and not cons.trans and (vd & cs): need = max(need, 1)
                if prod.opsel and (vd & (cs | set(cons.dst))): need = max(need, 1)
                if cons.rdlane and (vd & cs): need = max(need, 1)
                if cons.permlane and (vd & cs): need = max(need, 2)
                if cons.dpp and (vd & cs): need = max(need, 2)
                if sd & cs:
                    need = max(need, 4 if (cons.op in ('v_readlane_b32', 'v_writelane_b32', 'v_div_fmas_f32')) else 2)
                if sd & {'exec_lo', 'exec_hi'}:
                    if cons.dpp: need = max(need, 5)
                    if cons.rdlane or cons.permlane or cons.op == 'v_writelane_b32': need = max(need, 4)
            if cons.kind == 'vmem' and (sd & set(cons.src)): need = max(need, 5)
            if cons.kind in ('salu', 'branch', 'smem') and (sd & set(cons.src)): need = max(need, 1)
            if cons.kind == 'branch' and (sd & set(cons.src)): need = max(need, 5)
        elif prod.kind == 'mfma':
            big = {8: 12, 4: 8}[prod.passes]
            part = {8: 10, 4: 6}[prod.passes]
            war = {8: 7, 4: 3}[prod.passes]
            if cons.kind == 'mfma':
                if pd & set(cons.srcAB): need = max(need, big)
                if pd & set(cons.srcC):
                    if not (cons.srcC == prod.dst and cons.passes == prod.passes): need = max(need, part)
                elif pd & set(cons.dst):
                    need = max(need, part)
            elif cons.kind in ('valu', 'ds', 'vmem'):
                if pd & (set(cons.src) | set(cons.dst)): need = max(need, big)
                if set(prod.srcC) & set(cons.dst): need = max(need, war)
        elif prod.kind == 'salu':
            if 'm0' in pd and cons.lds_dma: need = max(need, 1)
        elif prod.kind == 'vmem':
            if prod.store_data and (set(prod.store_data) & set(cons.dst)):
                need = max(need, 2 if cons.kind in ('valu', 'mfma') else 1)
        return need

    def insert_nops(self, maxdist=13):
        items = self.items
        succ, pred = self._cfg(items)
        extra = [0] * len(items)
        for i, cons in enumerate(items):
            if cons.kind in ('label', 'raw', 'nop', 'waitcnt', 'misc'): continue
            worst = 0
            stack = [(p, 0) for p in pred[i]]
            seen = {}
            while stack:
                j, dist = stack.pop()
                if seen.get(j, 99) <= dist: continue
                seen[j] = dist
                pr = items[j]
                if pr.kind in ('valu', 'mfma', 'salu', 'vmem'):
                    nd = self._hazard_need(pr, cons)
                    if nd - dist > worst: worst = nd - dist
                d2 = dist + pr.nstates + (extra[j] if j < i else 0)
                if d2 < maxdist:
                    for p in pred[j]: stack.append((p, d2))
            extra[i] = worst
        new = []
        for i, it in enumerate(items):
            k = extra[i]
            while k > 0:
                m = min(k, 16)
                w = parse_inst(f's_nop {m - 1}'); w.comment = 'hazard'
                new.append(w); k -= m
            new.append(it)
        self.items = new

    def finalize(self):
        self.insert_waits()
        self.insert_nops()

    def emit(self):
        out = []
        for it in self.items:
            if it.is_label: out.append(f'{it.name}:')
            elif it.kind == 'raw': out.append(it.text)
            else:
                out.append('  ' + it.text + (f' ; {it.comment}' if it.comment else ''))
        return '\n'.join(out)

    def maxregs(self):
        mv = ma = ms = -1
        for it in self.items:
            for r in list(it.dst) + list(it.src):
                if r[0] == 'v' and r[1:].isdigit(): mv = max(mv, int(r[1:]))
                elif r[0] == 'a' and r[1:].isdigit(): ma = max(ma, int(r[1:]))
                elif r[0] == 's' and r[1:].isdigit(): ms = max(ms, int(r[1:]))
        return mv + 1, ma + 1, ms + 1

    def stats(self):
        from collections import Counter
        return Counter(it.kind for it in self.items)


class Alloc:
    def __init__(self, kind, lo, hi):
        self.kind = kind; self.free = [True] * hi
        for i in range(lo): self.free[i] = False
        self.hi = hi
    def __call__(self, n=1, align=None):
        if align is None: align = 1 if n == 1 else (2 if n == 2 else 4)
        i = 0
        while i + n <= self.hi:
            if i % align == 0 and all(self.free[i:i + n]):
                for j in range(i, i + n): self.free[j] = False
                return Reg(self.kind, i, n)
            i += 1
        raise RuntimeError(f'out of {self.kind} registers for {n}')
    def release(self, *regs):
        for r in regs:
            for j in range(r.i, r.i + r.n): self.free[j] = True

class Reg:
    def __init__(self, kind, i, n=1):
        self.kind = kind; self.i = i; self.n = n
    def __str__(self):
        return f'{self.kind}{self.i}' if self.n == 1 else f'{self.kind}[{self.i}:{self.i + self.n - 1}]'
    __repr__ = __str__
    def __getitem__(self, k):
        if isinstance(k, slice):
            a = k.start or 0; b = k.stop if k.stop is not None else self.n
            return Reg(self.kind, self.i + a, b - a)
        assert 0 <= k < self.n, (k, self.n)
        return Reg(self.kind, self.i + k, 1)
    def sub(self, a, n):
        assert a + n <= self.n
        return Reg(self.kind, self.i + a, n)


def kernel_text(k, lds_static=0, force_vgpr=None):
    nv, na, ns = k.maxregs()
    acc = max(4, (nv + 3) // 4 * 4)
    nfv = acc + na if na > 0 else nv
    if force_vgpr: nfv = max(nfv, force_vgpr)
    body = f""".text
.globl {k.name}
.p2align 8
.type {k.name},@function
{k.name}:
{k.emit()}
"""
    desc = f""".section .rodata,"a"
.p2align 6
.amdhsa_kernel {k.name}
  .amdhsa_next_free_vgpr {nfv}
  .amdhsa_next_free_sgpr {max(ns, 16)}
  .amdhsa_accum_offset {acc}
  .amdhsa_group_segment_fixed_size 0
  .amdhsa_kernarg_size 120
  .amdhsa_user_sgpr_count 2
  .amdhsa_user_sgpr_kernarg_segment_ptr 1
  .amdhsa_system_sgpr_workgroup_id_x 1
  .amdhsa_float_denorm_mode_32 3
  .amdhsa_float_denorm_mode_16_64 3
.end_amdhsa_kernel
"""
    return body, desc

def interleave(main, fill, pattern=None):
    out = []
    n = len(main); m = len(fill)
    j = 0
    for i, x in enumerate(main):
        out.append(x)
        tgt = (m * (i + 1) + n - 1) // n if pattern is None else pattern(i)
        while j < min(tgt, m):
            out.append(fill[j]); j += 1
    out += fill[j:]
    return out
```

```python
from asmdsl import *
from layout import *

def srd(k, s, base, nbytes, add=None):
    if add is None:
        k(f's_mov_b32 s{s}, s{base}')
        k(f's_and_b32 s{s+1}, s{base+1}, 0xffff')
    else:
        k(f's_add_u32 s{s}, s{base}, {add}')
        k(f's_addc_u32 s{s+1}, s{base+1}, 0')
        k(f's_and_b32 s{s+1}, s{s+1}, 0xffff')
    k(f's_mov_b32 s{s+2}, {hex(nbytes)}')
    k(f's_mov_b32 s{s+3}, 0x20000')

def cost(text):
    op = text.split()[0]
    if op in TRANS: return 2
    return 1

def pack(main, streams, cap=2):
    out = []
    pos = [0] * len(streams)
    nxt = [float(s.get('start', 0)) for s in streams]
    last = [-1] * len(streams)
    for gi, m in enumerate(main):
        out.append((m, None))
        room = cap
        progress = True
        while room > 0 and progress:
            progress = False
            for si, s in enumerate(streams):
                if pos[si] >= len(s['items']): continue
                it = s['items'][pos[si]]
                grp = it if isinstance(it, list) else [it]
                salu = all(x[0].startswith('s_') for x in grp)
                st = s.get('stride', 0)
                if salu:
                    if gi <= last[si] or gi < s.get('start', 0) - 1: continue
                else:
                    if gi < int(nxt[si]) or (st and gi <= last[si]): continue
                c = sum(cost(x[0]) for x in grp)
                if c <= room or (room == cap):
                    out += grp; room -= c; pos[si] += 1; last[si] = gi
                    if not salu: nxt[si] = max(nxt[si], gi - 0.5 if st % 1 else gi) + st
                    progress = True
                    if room <= 0: break
    left = []
    for si, s in enumerate(streams):
        for it in s['items'][pos[si]:]:
            left += it if isinstance(it, list) else [it]
    return out + left, len(left)

def stamp_begin(k):
    k('s_memtime s[90:91]')
    k('s_memrealtime s[92:93]')

def stamp_at(k, n):
    k(f's_memtime s[{80 + 2 * n}:{81 + 2 * n}]')
    k('s_waitcnt lgkmcnt(0)')

def stamp_end(k, srd_s, t0, t1, base=100 * MB):
    k('s_waitcnt vmcnt(0)')
    k('s_memtime s[88:89]')
    k('s_memrealtime s[94:95]')
    k('s_waitcnt lgkmcnt(0)')
    k(f'v_lshrrev_b32 {t1}, 6, v0')
    k(f'v_lshlrev_b32 {t1}, 5, {t1}')
    k(f's_lshl_b32 s96, s2, 8')
    k(f's_add_u32 s96, s96, {hex(base)}')
    k(f'v_add_u32 {t1}, s96, {t1}')
    for i, sr in enumerate([80, 82, 84, 86, 88]):
        k(f's_sub_u32 s{sr}, s{sr}, s90')
        k(f'v_mov_b32 {t0}, s{sr}')
        k(f'buffer_store_dword {t0}, {t1}, s[{srd_s}:{srd_s + 3}], 0 offen offset:{i * 4}')
    for i, sr in enumerate([92, 94]):
        k(f'v_mov_b32 {t0}, s{sr}')
        k(f'buffer_store_dword {t0}, {t1}, s[{srd_s}:{srd_s + 3}], 0 offen offset:{20 + i * 4}')

HDR = '.amdgcn_target "amdgcn-amd-amdhsa--gfx950"\n'
def write_file(fn, launches, kernels, head=''):
    s = head
    for nm, g, b, lds in launches:
        s += f'; @launch kernel={nm} grid=({g},1,1) block=({b},1,1) lds={lds}\n'
    s += HDR
    bodies = []; descs = []
    for k in kernels:
        b, d = kernel_text(k)
        bodies.append(b); descs.append(d)
    s += ''.join(bodies) + ''.join(descs)
    open(fn, 'w').write(s)
    return s
```

```python
from asmdsl import *
from layout import *
import sys

def srd(k, s, base, nbytes):
    k(f's_mov_b32 s{s}, s{base}')
    k(f's_and_b32 s{s+1}, s{base+1}, 0xffff')
    k(f's_mov_b32 s{s+2}, {hex(nbytes)}')
    k(f's_mov_b32 s{s+3}, 0x20000')

def place(main, streams):
    slots = [[] for _ in main]
    for start, stride, items in streams:
        for j, it in enumerate(items):
            g = min(int(start + j * stride), len(main) - 1)
            slots[g] += it if isinstance(it, list) else [it]
    out = []
    for m, s in zip(main, slots):
        out.append((m, None)); out += s
    return out

def gen_k1(name='kv_kernel', stamp=False, opt={}):
    k = Kernel(name)
    V = Alloc('v', 1, 256)
    k('s_cmp_ge_u32 s2, 256')
    k(f's_cbranch_scc1 {name}_end')
    k(f's_load_dwordx2 s[4:5], s[0:1], {ARG["ckv"]}')
    k(f's_load_dwordx4 s[8:11], s[0:1], {ARG["wuk"]}')
    k(f's_load_dwordx2 s[6:7], s[0:1], {ARG["ws"]}')
    if stamp:
        k('s_memtime s[62:63]')
        k('s_memrealtime s[70:71]')
        k('s_mov_b32 s74, 0')
        k('s_mov_b32 s75, 0')
    k('s_and_b32 s12, s2, 7')
    k('s_lshr_b32 s13, s2, 3')
    k('s_and_b32 s14, s13, 7')
    k('s_lshr_b32 s15, s13, 3')
    k('s_lshr_b32 s16, s15, 1')
    k('s_lshl_b32 s17, s12, 1')
    k('s_add_u32 s16, s16, s17')
    k('s_and_b32 s17, s15, 1')
    lane = V(); wv = V()
    k(f'v_and_b32 {lane}, 63, v0')
    k(f'v_lshrrev_b32 {wv}, 6, v0')
    k(f'v_readfirstlane_b32 s18, {wv}')
    t0 = V(); t1 = V(); t2 = V(); q = V()
    dA = [V() for _ in range(8)]; dW = [V() for _ in range(8)]
    k(f'v_lshrrev_b32 {t0}, 3, {lane}')
    k(f'v_lshlrev_b32 {t0}, 11, {t0}')
    k(f's_lshl_b32 s32, s14, 19')
    k(f's_lshl_b32 s33, s18, 17')
    k(f's_add_u32 s32, s32, s33')
    k(f'v_add_u32 {t0}, s32, {t0}')
    k(f'v_lshrrev_b32 {t1}, 4, {lane}')
    k(f'v_and_b32 {t2}, 7, {lane}')
    k(f'v_xor_b32 {t1}, {t1}, {t2}')
    k(f'v_xor_b32 {t2}, 4, {t1}')
    k(f'v_lshl_add_u32 {t1}, {t1}, 4, {t0}')
    k(f'v_lshl_add_u32 {t2}, {t2}, 4, {t0}')
    for i in range(8):
        c = i * 8 * 2048 - (i % 4) * 1024
        k(f'v_add_u32 {dA[i]}, {hex(c)}, {t1 if i % 2 == 0 else t2}')
    k(f'v_lshrrev_b32 {t0}, 5, {lane}')
    k(f'v_bfe_u32 {t1}, {lane}, 1, 4')
    k(f'v_xor_b32 {t1}, {t1}, {t0}')
    k(f'v_lshlrev_b32 {t0}, 13, {t0}')
    k(f's_lshl_b32 s32, s16, 9')
    k(f's_lshl_b32 s33, s18, 17')
    k(f's_add_u32 s32, s32, s33')
    k(f'v_add_u32 {t0}, s32, {t0}')
    k(f'v_and_b32 {q}, 1, {lane}')
    k(f'v_lshl_add_u32 {t0}, {q}, 4, {t0}')
    for i in range(8):
        x = 2 * (i & 1) | (((i >> 2) & 1) << 2)
        c = i * 2 * 8192 - (i % 4) * 1024
        k(f'v_xor_b32 {t2}, {x}, {t1}')
        k(f'v_lshl_add_u32 {t2}, {t2}, 5, {t0}')
        k(f'v_add_u32 {dW[i]}, {hex(c)}, {t2}')
    k('s_waitcnt lgkmcnt(0)')
    srd(k, 20, 4, 2048 * 1024 * 2)
    k('s_cmp_eq_u32 s17, 0')
    k('s_cselect_b32 s24, s8, s10')
    k('s_cselect_b32 s25, s9, s11')
    k('s_and_b32 s25, s25, 0xffff')
    k(f's_mov_b32 s26, {hex(1024 * 4096 * 2)}')
    k('s_mov_b32 s27, 0x20000')
    srd(k, 28, 6, 48 * MB)
    k('s_lshl_b32 s34, s18, 13')
    k('s_mov_b32 s36, 0')
    k('s_mov_b32 s37, 0')
    def dma(stage):
        tg = f'dma{stage}'
        L = []
        for half in range(2):
            for i in range(4):
                e = [(f'buffer_load_dwordx4 {dA[half * 4 + i]}, s[20:23], s36 offen offset:{i * 1024} lds', tg)]
                L.append(e)
        for half in range(2):
            for i in range(4):
                e = [(f'buffer_load_dwordx4 {dW[half * 4 + i]}, s[24:27], s37 offen offset:{i * 1024} lds', tg)]
                L.append(e)
        m0 = lambda g: (f's_add_u32 m0, s34, {hex((g >> 1) * 65536 + stage * 32768 + (g & 1) * 4096)}', None)
        for g in (1, 2, 3): L[g * 4 - 1].append(m0(g))
        L[8].append(('s_add_u32 s36, s36, 128', None))
        L[15].append((f's_add_u32 s37, s37, {hex(64 * 8192)}', None))
        return [[m0(0)]] + L
    for st in (0, 1):
        for e in dma(st):
            for x, tg in e: k(x, tag=tg)
    rA = [V() for _ in range(2)]; rW = [V() for _ in range(8)]
    g = V(); r = V()
    k(f'v_lshrrev_b32 {g}, 4, {lane}')
    k(f'v_bfe_u32 {t0}, {lane}, 1, 3')
    k(f'v_xor_b32 {t0}, {t0}, {g}')
    k(f'v_and_b32 {t1}, 15, {lane}')
    k(f'v_lshlrev_b32 {t1}, 7, {t1}')
    k(f's_and_b32 s32, s18, 1')
    k(f's_lshl_b32 s32, s32, 14')
    k(f'v_add_u32 {t1}, s32, {t1}')
    for s in range(2):
        k(f'v_xor_b32 {t2}, {4 * s}, {t0}')
        k(f'v_lshl_add_u32 {rA[s]}, {t2}, 4, {t1}')
    k(f'v_bfe_u32 {r}, {lane}, 2, 2')
    k(f'v_lshl_add_u32 {t0}, {g}, 3, {r}')
    k(f'v_lshlrev_b32 {t0}, 9, {t0}')
    k(f'v_and_b32 {t1}, 3, {lane}')
    k(f'v_lshl_add_u32 {t0}, {t1}, 3, {t0}')
    k(f's_lshr_b32 s32, s18, 1')
    k(f's_lshl_b32 s32, s32, 8')
    k(f's_add_u32 s32, s32, 0x10000')
    k(f'v_add_u32 {t0}, s32, {t0}')
    k(f'v_bfe_u32 {t1}, {lane}, 2, 3')
    for nt in range(8):
        k(f'v_xor_b32 {t2}, {nt}, {t1}')
        k(f'v_lshl_add_u32 {rW[nt]}, {t2}, 5, {t0}')
    FA = [[V(4) for _ in range(8)] for _ in range(2)]
    FW = [[V(4) for _ in range(8)] for _ in range(2)]
    for i in range(256): k(f'v_accvgpr_write_b32 a{i}, 0')
    def reads(stage, s, fs):
        L = []
        for i in range(8):
            L.append((f'ds_read_b128 {FA[fs][i]}, {rA[s]} offset:{stage * 32768 + i * 2048}', None))
            for j in range(2):
                L.append((f'ds_read_b64_tr_b16 {FW[fs][i].sub(2 * j, 2)}, {rW[i]} offset:{stage * 32768 + (32 * s + 4 * j) * 512}', None))
        return L
    def acc(tt, nt): return f'a[{(tt * 8 + nt) * 4}:{(tt * 8 + nt) * 4 + 3}]'
    def mfmas(fs, isV):
        L = []
        order = []
        for tt in range(8):
            for nt in (range(8) if tt % 2 == 0 else range(7, -1, -1)): order.append((tt, nt))
        for tt, nt in order:
            a, b = (FA[fs][tt], FW[fs][nt]) if isV else (FW[fs][nt], FA[fs][tt])
            L.append(f'v_mfma_f32_16x16x32_bf16 {acc(tt, nt)}, {a}, {b}, {acc(tt, nt)}')
        return L
    k.wait('dma0')
    k('s_barrier')
    if stamp:
        k('s_memtime s[60:61]')
        k('s_waitcnt lgkmcnt(0)')
    for x, tg in reads(0, 0, 0): k(x)
    k('s_cmp_eq_u32 s17, 0')
    k(f's_cbranch_scc0 {name}_V')
    rs = opt.get('rstride', 2); ds = opt.get('dstride', 2); d0 = opt.get('d0', 1)
    for isV in (0, 1):
        if isV: k.label(f'{name}_V')
        k('s_mov_b32 s38, 0')
        lp = f'{name}_loop{isV}'
        def body(last):
            for p in range(2):
                k('s_waitcnt lgkmcnt(0)')
                for x, tg in place(mfmas(0, isV), [(0, rs, reads(p, 1, 1))]): k(x, tag=tg)
                fin = last and p == 1
                k('s_waitcnt lgkmcnt(0)')
                if not fin:
                    if stamp and opt.get('wstamp'):
                        k('s_memtime s[76:77]')
                    k.wait(f'dma{1 - p}')
                    if stamp and opt.get('wstamp'):
                        k('s_memtime s[78:79]')
                    k('s_barrier')
                    if stamp and opt.get('wstamp'):
                        k('s_memtime s[80:81]')
                        k('s_waitcnt lgkmcnt(0)')
                        k('s_sub_u32 s82, s78, s76')
                        k('s_add_u32 s74, s74, s82')
                        k('s_sub_u32 s82, s80, s78')
                        k('s_add_u32 s75, s75, s82')
                st = []
                if not fin: st.append((0, rs, reads(1 - p, 0, 0)))
                if not last: st.append((d0, ds, dma(p)))
                for x, tg in place(mfmas(1, isV), st): k(x, tag=tg)
        k.label(lp)
        body(False)
        k('s_add_u32 s38, s38, 1')
        k('s_cmp_lt_u32 s38, 7')
        k(f's_cbranch_scc1 {lp}')
        body(True)
        if stamp:
            k('s_memtime s[68:69]')
            k('s_waitcnt lgkmcnt(0)')
        so = V()
        k(f'v_lshlrev_b32 {so}, 4, {lane}')
        k('s_and_b32 s32, s18, 1')
        k('s_lshr_b32 s33, s18, 1')
        k('s_lshl_b32 s40, s16, 20')
        if isV: k(f's_add_u32 s40, s40, {hex(WS_V)}')
        k('s_lshl_b32 s41, s14, 17')
        k('s_add_u32 s40, s40, s41')
        k('s_lshl_b32 s41, s32, 16')
        k('s_add_u32 s40, s40, s41')
        k(f's_lshl_b32 s41, s33, {13 if isV else 12}')
        k('s_add_u32 s40, s40, s41')
        tmp = [V(8), V(8)]
        pk = [V(4) for _ in range(4)]
        n = 0
        for o in range(8):
            for u in range(4):
                if not isV:
                    tt = o; A0 = (tt * 8 + 2 * u) * 4; A1 = A0 + 4
                    off = tt * 8192 + u * 1024
                else:
                    nt = (o & 1) * 4 + u; uu = o >> 1
                    A0 = ((2 * uu) * 8 + nt) * 4; A1 = ((2 * uu + 1) * 8 + nt) * 4
                    off = uu * 16384 + nt * 1024
                T = tmp[n % 2]; P = pk[n % 4]; n += 1
                for j in range(4): k(f'v_accvgpr_read_b32 {T[j]}, a{A0 + j}')
                for j in range(4): k(f'v_accvgpr_read_b32 {T[4 + j]}, a{A1 + j}')
                for j in range(4): k(f'v_cvt_pk_bf16_f32 {P[j]}, {T[2 * j]}, {T[2 * j + 1]}')
                if u == 0: k(f's_add_u32 s41, s40, {hex(off & ~0xfff)}')
                k(f'buffer_store_dwordx4 {P}, {so}, s[28:31], s41 offen offset:{off & 0xfff}')
        V.release(so, *tmp, *pk)
        if stamp:
            k('s_memtime s[64:65]')
            k('s_waitcnt lgkmcnt(0)')
            k('s_waitcnt vmcnt(0)')
            k('s_memtime s[66:67]')
            k('s_memrealtime s[72:73]')
            k('s_waitcnt lgkmcnt(0)')
            k(f's_lshl_b32 s32, s2, 5')
            k(f's_add_u32 s32, s32, {hex(100 * MB)}')
            k(f'v_mov_b32 {t2}, s32')
            k(f's_mov_b32 s30, {hex(128 * MB)}')
            for i, sr in enumerate([60, 68, 64, 66]):
                k(f's_sub_u32 s{sr}, s{sr}, s62')
                k(f'v_mov_b32 {t0}, s{sr}')
                k(f'buffer_store_dword {t0}, {t2}, s[28:31], 0 offen offset:{i * 4}')
            for i, sr in enumerate([70, 72, 74, 75]):
                k(f'v_mov_b32 {t0}, s{sr}')
                k(f'buffer_store_dword {t0}, {t2}, s[28:31], 0 offen offset:{16 + i * 4}')
        k('s_endpgm')
    k.label(f'{name}_end')
    k('s_endpgm')
    k.finalize()
    return k

if __name__ == '__main__':
    for nm, opt in [('a', dict()), ('b', dict(wstamp=1)), ('c', dict(rstride=1, dstride=1, d0=24)), ('d', dict(rstride=2, dstride=3, d0=1)), ('e', dict(rstride=1, dstride=1, d0=0))]:
        k = gen_k1(stamp=True, opt=opt)
        b, d = kernel_text(k)
        open(f'k1b_{nm}.s', 'w').write('; @launch kernel=kv_kernel grid=(256,1,1) block=(256,1,1) lds=131072\n.amdgcn_target "amdgcn-amd-amdhsa--gfx950"\n' + b + d)
        print(k.stats(), k.maxregs())
```

```python
from asmdsl import *
from layout import *
import sys
from k1b import srd, place

def gen_k1(name='kv_kernel', stamp=False, opt={}):
    NS = opt.get('ns', 4)
    k = Kernel(name)
    V = Alloc('v', 1, 256)
    k('s_cmp_ge_u32 s2, 256')
    k(f's_cbranch_scc1 {name}_end')
    k(f's_load_dwordx2 s[4:5], s[0:1], {ARG["ckv"]}')
    k(f's_load_dwordx4 s[8:11], s[0:1], {ARG["wuk"]}')
    k(f's_load_dwordx2 s[6:7], s[0:1], {ARG["ws"]}')
    if stamp:
        k('s_memtime s[62:63]')
        k('s_memrealtime s[70:71]')
        k('s_mov_b32 s74, 0')
        k('s_mov_b32 s75, 0')
    k('s_and_b32 s12, s2, 7')
    k('s_lshr_b32 s13, s2, 3')
    k('s_and_b32 s14, s13, 7')
    k('s_lshr_b32 s15, s13, 3')
    k('s_lshr_b32 s16, s15, 1')
    k('s_lshl_b32 s17, s12, 1')
    k('s_add_u32 s16, s16, s17')
    k('s_and_b32 s17, s15, 1')
    lane = V(); wv = V()
    k(f'v_and_b32 {lane}, 63, v0')
    k(f'v_lshrrev_b32 {wv}, 6, v0')
    k(f'v_readfirstlane_b32 s18, {wv}')
    t0 = V(); t1 = V(); t2 = V(); q = V()
    dA = [V() for _ in range(4)]; dW = [V() for _ in range(4)]
    WB = NS * 16384
    k(f'v_lshrrev_b32 {t0}, 2, {lane}')
    k(f'v_lshlrev_b32 {t0}, 11, {t0}')
    k(f's_lshl_b32 s32, s14, 19')
    k(f's_lshl_b32 s33, s18, 17')
    k(f's_add_u32 s32, s32, s33')
    k(f'v_add_u32 {t0}, s32, {t0}')
    k(f'v_lshrrev_b32 {t1}, 4, {lane}')
    k(f'v_sub_u32 {t1}, 0, {t1}')
    k(f'v_xor_b32 {t1}, {t1}, {lane}')
    k(f'v_and_b32 {t1}, 3, {t1}')
    k(f'v_lshl_add_u32 {t1}, {t1}, 4, {t0}')
    for i in range(4):
        c = i * 16 * 2048 - i * 1024
        k(f'v_add_u32 {dA[i]}, {hex(c)}, {t1}')
    k(f'v_lshrrev_b32 {t0}, 5, {lane}')
    k(f'v_bfe_u32 {t1}, {lane}, 1, 4')
    k(f'v_xor_b32 {t1}, {t1}, {t0}')
    k(f's_and_b32 s32, s18, 1')
    k(f's_lshl_b32 s32, s32, 2')
    k(f'v_xor_b32 {t1}, s32, {t1}')
    k(f'v_lshlrev_b32 {t0}, 13, {t0}')
    k(f's_lshl_b32 s32, s16, 9')
    k(f's_lshl_b32 s33, s18, 16')
    k(f's_add_u32 s32, s32, s33')
    k(f'v_add_u32 {t0}, s32, {t0}')
    k(f'v_and_b32 {q}, 1, {lane}')
    k(f'v_lshl_add_u32 {t0}, {q}, 4, {t0}')
    for i in range(4):
        x = 2 * (i & 1)
        c = i * 2 * 8192 - i * 1024
        k(f'v_xor_b32 {t2}, {x}, {t1}')
        k(f'v_lshl_add_u32 {t2}, {t2}, 5, {t0}')
        k(f'v_add_u32 {dW[i]}, {hex(c)}, {t2}')
    k('s_waitcnt lgkmcnt(0)')
    srd(k, 20, 4, 2048 * 1024 * 2)
    k('s_cmp_eq_u32 s17, 0')
    k('s_cselect_b32 s24, s8, s10')
    k('s_cselect_b32 s25, s9, s11')
    k('s_and_b32 s25, s25, 0xffff')
    k(f's_mov_b32 s26, {hex(1024 * 4096 * 2)}')
    k('s_mov_b32 s27, 0x20000')
    srd(k, 28, 6, 48 * MB)
    k('s_lshl_b32 s34, s18, 12')
    k('s_mov_b32 s36, 0')
    k('s_mov_b32 s37, 0')
    def dma(slot):
        tg = f'dma{slot}'
        L = []
        for i in range(4):
            L.append([(f'buffer_load_dwordx4 {dA[i]}, s[20:23], s36 offen offset:{i * 1024} lds', tg)])
        for i in range(4):
            L.append([(f'buffer_load_dwordx4 {dW[i]}, s[24:27], s37 offen offset:{i * 1024} lds', tg)])
        m0 = lambda g: (f's_add_u32 m0, s34, {hex(g * WB + slot * 16384)}', None)
        L[3].append(m0(1))
        L[4].append(('s_add_u32 s36, s36, 64', None))
        L[7].append((f's_add_u32 s37, s37, {hex(32 * 8192)}', None))
        return m0(0), L
    for st in range(NS):
        m, L = dma(st)
        k(m[0])
        for e in L:
            for x, tg in e: k(x, tag=tg)
    rA = V(); rW = [V() for _ in range(8)]
    g = V(); r = V()
    k(f'v_lshrrev_b32 {g}, 4, {lane}')
    k(f'v_bfe_u32 {r}, {lane}, 2, 2')
    k(f'v_sub_u32 {t0}, 0, {r}')
    k(f'v_xor_b32 {t0}, {t0}, {g}')
    k(f'v_and_b32 {t0}, 3, {t0}')
    k(f'v_and_b32 {t1}, 15, {lane}')
    k(f'v_lshlrev_b32 {t1}, 6, {t1}')
    k(f's_and_b32 s32, s18, 1')
    k(f's_lshl_b32 s32, s32, 13')
    k(f'v_add_u32 {t1}, s32, {t1}')
    k(f'v_lshl_add_u32 {rA}, {t0}, 4, {t1}')
    k(f'v_lshl_add_u32 {t0}, {g}, 3, {r}')
    k(f'v_lshlrev_b32 {t0}, 9, {t0}')
    k(f'v_and_b32 {t1}, 3, {lane}')
    k(f'v_lshl_add_u32 {t0}, {t1}, 3, {t0}')
    k(f's_lshr_b32 s32, s18, 1')
    k(f's_lshl_b32 s32, s32, 8')
    k(f's_add_u32 s32, s32, {hex(WB)}')
    k(f'v_add_u32 {t0}, s32, {t0}')
    k(f'v_bfe_u32 {t1}, {lane}, 2, 3')
    for nt in range(8):
        k(f'v_xor_b32 {t2}, {nt}, {t1}')
        k(f'v_lshl_add_u32 {rW[nt]}, {t2}, 5, {t0}')
    FA = [[V(4) for _ in range(8)] for _ in range(2)]
    FW = [[V(4) for _ in range(8)] for _ in range(2)]
    for i in range(256): k(f'v_accvgpr_write_b32 a{i}, 0')
    def reads(slot, fs):
        L = []
        for i in range(8):
            L.append((f'ds_read_b128 {FA[fs][i]}, {rA} offset:{slot * 16384 + i * 1024}', None))
            for j in range(2):
                L.append((f'ds_read_b64_tr_b16 {FW[fs][i].sub(2 * j, 2)}, {rW[i]} offset:{slot * 16384 + (4 * j) * 512}', None))
        return L
    def acc(tt, nt): return f'a[{(tt * 8 + nt) * 4}:{(tt * 8 + nt) * 4 + 3}]'
    def mfmas(fs, isV):
        L = []
        order = []
        for tt in range(8):
            for nt in (range(8) if tt % 2 == 0 else range(7, -1, -1)): order.append((tt, nt))
        for tt, nt in order:
            a, b = (FA[fs][tt], FW[fs][nt]) if isV else (FW[fs][nt], FA[fs][tt])
            L.append(f'v_mfma_f32_16x16x32_bf16 {acc(tt, nt)}, {a}, {b}, {acc(tt, nt)}')
        return L
    k.wait('dma0')
    k('s_barrier')
    if stamp:
        k('s_memtime s[60:61]')
        k('s_waitcnt lgkmcnt(0)')
    for x, tg in reads(0, 0): k(x)
    k('s_cmp_eq_u32 s17, 0')
    k(f's_cbranch_scc0 {name}_V')
    rs = opt.get('rstride', 2); ds = opt.get('dstride', 8); d0 = opt.get('d0', 1)
    assert NS == 4
    for isV in (0, 1):
        if isV: k.label(f'{name}_V')
        k('s_mov_b32 s38, 0')
        lp = f'{name}_loop{isV}'
        def body(last):
            for s in range(NS):
                fin = last and s == NS - 1
                k('s_waitcnt lgkmcnt(0)')
                st = []
                if not fin:
                    k.wait(f'dma{(s + 1) % NS}')
                    k('s_barrier')
                    st.append((0, rs, reads((s + 1) % NS, (s + 1) % 2)))
                if not last:
                    m, L = dma(s)
                    st.append((0, 1, [m]))
                    st.append((d0, ds, L))
                for x, tg in place(mfmas(s % 2, isV), st): k(x, tag=tg)
        k.label(lp)
        body(False)
        k('s_add_u32 s38, s38, 1')
        k('s_cmp_lt_u32 s38, 7')
        k(f's_cbranch_scc1 {lp}')
        body(True)
        if stamp:
            k('s_memtime s[68:69]')
            k('s_waitcnt lgkmcnt(0)')
        so = V()
        k(f'v_lshlrev_b32 {so}, 4, {lane}')
        k('s_and_b32 s32, s18, 1')
        k('s_lshr_b32 s33, s18, 1')
        k('s_lshl_b32 s40, s16, 20')
        if isV: k(f's_add_u32 s40, s40, {hex(WS_V)}')
        k('s_lshl_b32 s41, s14, 17')
        k('s_add_u32 s40, s40, s41')
        k('s_lshl_b32 s41, s32, 16')
        k('s_add_u32 s40, s40, s41')
        k(f's_lshl_b32 s41, s33, {13 if isV else 12}')
        k('s_add_u32 s40, s40, s41')
        tmp = [V(8), V(8)]
        pk = [V(4) for _ in range(4)]
        n = 0
        for o in range(8):
            for u in range(4):
                if not isV:
                    tt = o; A0 = (tt * 8 + 2 * u) * 4; A1 = A0 + 4
                    off = tt * 8192 + u * 1024
                else:
                    nt = (o & 1) * 4 + u; uu = o >> 1
                    A0 = ((2 * uu) * 8 + nt) * 4; A1 = ((2 * uu + 1) * 8 + nt) * 4
                    off = uu * 16384 + nt * 1024
                T = tmp[n % 2]; P = pk[n % 4]; n += 1
                for j in range(4): k(f'v_accvgpr_read_b32 {T[j]}, a{A0 + j}')
                for j in range(4): k(f'v_accvgpr_read_b32 {T[4 + j]}, a{A1 + j}')
                for j in range(4): k(f'v_cvt_pk_bf16_f32 {P[j]}, {T[2 * j]}, {T[2 * j + 1]}')
                if u == 0: k(f's_add_u32 s41, s40, {hex(off & ~0xfff)}')
                k(f'buffer_store_dwordx4 {P}, {so}, s[28:31], s41 offen offset:{off & 0xfff}' + opt.get('stmod', ''))
        V.release(so, *tmp, *pk)
        if stamp:
            k('s_memtime s[64:65]')
            k('s_waitcnt lgkmcnt(0)')
            k('s_waitcnt vmcnt(0)')
            k('s_memtime s[66:67]')
            k('s_memrealtime s[72:73]')
            k('s_waitcnt lgkmcnt(0)')
            k(f's_lshl_b32 s32, s2, 5')
            k(f's_add_u32 s32, s32, {hex(100 * MB)}')
            k(f'v_mov_b32 {t2}, s32')
            k(f's_mov_b32 s30, {hex(128 * MB)}')
            for i, sr in enumerate([60, 68, 64, 66]):
                k(f's_sub_u32 s{sr}, s{sr}, s62')
                k(f'v_mov_b32 {t0}, s{sr}')
                k(f'buffer_store_dword {t0}, {t2}, s[28:31], 0 offen offset:{i * 4}')
            for i, sr in enumerate([70, 72, 74, 75]):
                k(f'v_mov_b32 {t0}, s{sr}')
                k(f'buffer_store_dword {t0}, {t2}, s[28:31], 0 offen offset:{16 + i * 4}')
        k('s_endpgm')
    k.label(f'{name}_end')
    k('s_endpgm')
    k.finalize()
    return k

if __name__ == '__main__':
    for nm, opt in [('a', dict()), ('b', dict(rstride=1)), ('c', dict(rstride=2, dstride=7, d0=3)), ('d', dict(stmod=' nt')), ('e', dict(stmod=' sc1'))]:
        k = gen_k1(stamp=True, opt=opt)
        b, d = kernel_text(k)
        open(f'k1c_{nm}.s', 'w').write('; @launch kernel=kv_kernel grid=(256,1,1) block=(256,1,1) lds=131072\n.amdgcn_target "amdgcn-amd-amdhsa--gfx950"\n' + b + d)
        print(k.stats(), k.maxregs())
```

```python
from common import *
import sys

BIAS = 40.0
import struct
def f2u(x): return struct.unpack('<I', struct.pack('<f', x))[0]
MF = 'v_mfma_f32_16x16x32_bf16'
PART_STRIDE = 72 * 1024

def gen_k2(name='attn_kernel', stamp=False, opt={}):
    UA = opt.get('UA', 34)
    k = Kernel(name)
    V = Alloc('v', 1, 128)
    O = lambda dt, qt: Reg('v', 128 + (dt * 2 + qt) * 4, 4)
    Qf = lambda qt, ds: Reg('a', (qt * 8 + ds) * 4, 4)
    Kf = lambda kt, ds: Reg('a', 64 + (kt * 8 + ds) * 4, 4)
    Vf = lambda dt: Reg('a', 128 + dt * 4, 4)
    ONES = Reg('a', 192, 4)
    big = V(64, 4)
    S = [[[big.sub(((b * 2 + kt) * 2 + qt) * 4, 4) for qt in range(2)] for kt in range(2)] for b in range(2)]
    P = [[big.sub(32 + (b * 2 + qt) * 4, 4) for qt in range(2)] for b in range(2)]
    NM = [[big.sub(48 + (kt * 2 + qt) * 4, 4) for qt in range(2)] for kt in range(2)]
    L = [V(4), V(4)]
    E = V(8, 4)
    ML = V(4)
    lane = V(); l16 = V(); vdma = V(); rp = V(); chk = V(); msk = V()
    t0 = V(); t1 = V(); t2 = V(); t3 = V()
    T = V(8, 4)
    sw, shead, spair, styp = 's24', 's25', 's26', 's27'
    sK = ['s28', 's29']; sEnd, sJump, sD = 's30', 's31', 's32'
    sCnt, sPh, sIdle, sMode, sDiag, sNext, sPar, sPend = 's33', 's34', 's35', 's36', 's37', 's38', 's39', 's52'
    sQb, sU = 's53', 's54'
    HUGE = 64 * MB

    k('s_cmp_ge_u32 s2, 256')
    k(f's_cbranch_scc1 {name}_end')
    k(f's_load_dwordx4 s[4:7], s[0:1], {ARG["dbg"]}')
    if stamp: stamp_begin(k)
    k(f'v_and_b32 {lane}, 63, v0')
    k(f'v_lshrrev_b32 {t0}, 6, v0')
    k(f'v_readfirstlane_b32 {sw}, {t0}')
    k(f'v_lshlrev_b32 {l16}, 4, {lane}')
    k(f'v_lshl_add_u32 {vdma}, {t0}, 12, {l16}')
    k(f'v_mov_b32 {rp}, {l16}')
    k('s_and_b32 s40, s2, 7')
    k('s_lshr_b32 s41, s2, 3')
    k(f's_and_b32 {spair}, s41, 7')
    k(f's_bfe_u32 s42, s41, 0x10003')
    k(f's_lshl_b32 {shead}, s40, 1')
    k(f's_add_u32 {shead}, {shead}, s42')
    k(f's_lshr_b32 {styp}, s41, 4')
    la, lb7, ldone = k.newlabel('A'), k.newlabel('B7'), k.newlabel('segd')
    k(f's_sub_u32 {sQb}, 15, {spair}')
    k(f's_mov_b32 {sPend}, 0')
    k(f's_cmp_eq_u32 {styp}, 1')
    k(f's_cbranch_scc1 {la}')
    k(f's_cmp_eq_u32 {spair}, 7')
    k(f's_cbranch_scc1 {lb7}')
    k(f's_mov_b32 s55, {UA}')
    k(f's_lshl_b32 {sU}, {sQb}, 2')
    k(f's_add_u32 {sU}, {sU}, {4 - UA}' if 4 - UA >= 0 else f's_sub_u32 {sU}, {sU}, {UA - 4}')
    k(f's_mov_b32 {sDiag}, 1')
    k(f's_mov_b32 {sMode}, 1')
    k(f's_mov_b32 {sNext}, 1')
    k(f's_branch {ldone}')
    k.label(lb7)
    k(f's_mov_b32 {sQb}, 7')
    k(f's_mov_b32 s55, 0')
    k(f's_mov_b32 {sU}, 32')
    k(f's_mov_b32 {sDiag}, 1')
    k(f's_mov_b32 {sMode}, 0')
    k(f's_mov_b32 {sNext}, 0')
    k(f's_branch {ldone}')
    k.label(la)
    k(f's_mov_b32 s55, 0')
    k(f's_mov_b32 {sNext}, 0')
    k(f's_cmp_eq_u32 {spair}, 7')
    k(f's_cselect_b32 {sU}, 36, {UA}')
    k(f's_cselect_b32 {sDiag}, 1, 0')
    k(f's_cselect_b32 {sMode}, 0, 2')
    k.label(ldone)
    k(f's_add_u32 {sEnd}, s55, {sU}')
    k(f's_add_u32 {sEnd}, {sEnd}, {sNext}')
    k(f's_lshl_b32 {sEnd}, {sEnd}, 14')
    k(f's_cmp_eq_u32 {sNext}, 1')
    k(f's_cselect_b32 {sJump}, 0, {hex(HUGE)}')
    k(f's_lshl_b32 s40, {shead}, 20')
    k('s_waitcnt lgkmcnt(0)')
    if opt.get('pstamp'): stamp_at(k, 0)
    srd(k, 8, 6, MB, add='s40')
    k(f's_add_u32 s40, s40, {hex(WS_V)}')
    srd(k, 12, 6, MB, add='s40')
    srd(k, 16, 6, 256 * MB)
    srd(k, 20, 4, 256)
    k(f's_lshl_b32 {sD}, {sw}, 12')

    def kdma(sreg): return [(f'buffer_load_dwordx4 {vdma}, s[8:11], {sreg} offen offset:{i * 1024} lds', None) for i in range(4)]
    def vdma_(sreg): return [(f'buffer_load_dwordx4 {vdma}, s[12:15], {sreg} offen offset:{i * 1024} lds', None) for i in range(4)]
    def qloads(qbreg):
        k(f's_lshl_b32 s40, {shead}, 20')
        k(f's_lshl_b32 s41, {qbreg}, 16')
        k(f's_add_u32 s40, s40, s41')
        k(f's_lshl_b32 s41, {sw}, 14')
        k(f's_add_u32 s40, s40, s41')
        k(f's_add_u32 s40, s40, {hex(WS_Q)}')
        for n in range(16):
            if n and n % 4 == 0: k('s_add_u32 s40, s40, 0x1000')
            k(f'buffer_load_dwordx4 {Qf(n // 8, n % 8)}, {l16}, s[16:19], s40 offen offset:{(n % 4) * 1024}')
    k(f's_lshl_b32 {sK[0]}, s55, 14')
    k(f's_mov_b32 m0, {sD}')
    for x, _ in kdma(sK[0]): k(x)
    qloads(sQb)
    k(f's_add_u32 {sK[1]}, {sK[0]}, 0x4000')
    k(f's_add_u32 m0, {sD}, 0x8000')
    for x, _ in kdma(sK[1]): k(x)
    k(f's_add_u32 m0, {sD}, 0x14000')
    for x, _ in vdma_(sK[0]): k(x)
    k(f's_add_u32 {sK[0]}, {sK[1]}, 0x4000')
    k(f's_add_u32 m0, {sD}, 0x10000')
    for x, _ in kdma(sK[0]): k(x)
    k(f's_xor_b32 {sD}, {sD}, 0x10000')
    if opt.get('pstamp'): stamp_at(k, 1)
    k(f'v_mov_b32 {t0}, 0x3f803f80')
    for j in range(4): k(f'v_accvgpr_write_b32 {ONES[j]}, {t0}')
    k(f'v_mov_b32 {msk}, 0x40004000')
    k(f'v_lshrrev_b32 {t0}, 4, {lane}')
    k(f'v_lshlrev_b32 {t0}, 2, {t0}')
    k(f'v_and_b32 {t1}, 15, {lane}')
    for r in range(4):
        k(f'v_add_u32 {t2}, {r}, {t0}')
        k(f'v_cmp_le_u32 s[{44 + 2 * r}:{45 + 2 * r}], {t2}, {t1}')
    def zero_state():
        for i in range(0, 128, 2): k(f'v_mov_b64 v[{128 + i}:{129 + i}], 0')
        for qt in range(2):
            for j in (0, 2): k(f'v_mov_b64 {L[qt].sub(j, 2)}, 0')
        for kt in range(2):
            for qt in range(2):
                for j in (0, 2): k(f'v_mov_b64 {NM[kt][qt].sub(j, 2)}, 0')
        k(f'v_mov_b32 {ML[0]}, 0'); k(f'v_mov_b32 {ML[2]}, 0')
    def seg_counts():
        k(f's_sub_u32 {sIdle}, 3, {sw}')
        k(f's_mul_i32 {sIdle}, {sIdle}, {sDiag}')
        k(f's_sub_u32 {sCnt}, {sU}, {sIdle}')
        k(f's_sub_u32 {sCnt}, {sCnt}, 1')
    def apply_mask():
        k(f'v_mov_b32 {t0}, {hex(f2u(-1e30))}')
        for r in range(4):
            for q in range(2):
                k(f'v_cndmask_b32 {NM[q][q][r]}, {t0}, {NM[q][q][r]}, s[{44 + 2 * r}:{45 + 2 * r}]')
            k(f'v_mov_b32 {NM[1][0][r]}, {t0}')
    zero_state()
    seg_counts()

    def sync(first=False):
        k(f's_waitcnt vmcnt({28 if first else 16}) lgkmcnt(0)')
        k('s_barrier')
    def dma_items(par):
        r = sK[(par + 1) % 2]; o = sK[par]
        base = 0x8000 if par == 0 else 0
        it = []
        v = vdma_(r); kk = kdma(r)
        it.append([(f's_add_u32 m0, {sD}, {hex(base + 0x4000)}', None)])
        it += [[x] for x in v[:3]]
        it.append([v[3]])
        it.append([(f's_add_u32 {r}, {o}, 0x4000', None)])
        it.append([(f's_cmp_eq_u32 {r}, {sEnd}', None), (f's_cselect_b32 {r}, {sJump}, {r}', None)])
        it.append([(f's_add_u32 m0, {sD}, {hex(base)}' if base else f's_mov_b32 m0, {sD}', None)])
        it += [[x] for x in kk]
        if par == 0: it.append([(f's_xor_b32 {sD}, {sD}, 0x10000', None)])
        return it
    def kreads(par): return [(f'ds_read_b128 {Kf(n // 8, n % 8)}, {rp} offset:{par * 32768 + n * 1024}', None) for n in range(16)]
    def vreads(par): return [(f'ds_read_b128 {Vf(n)}, {rp} offset:{par * 32768 + 16384 + n * 1024}', None) for n in range(16)]
    def rp_toggle(par): return [(f'v_xor_b32 {rp}, 0x10000, {rp}', None)] if par == 1 else []
    def g1(b):
        Lm = []
        for kt in range(2):
            for ds in range(8):
                for qt in range(2):
                    c = NM[kt][qt] if ds == 0 else S[b][kt][qt]
                    Lm.append(f'{MF} {S[b][kt][qt]}, {Kf(kt, ds)}, {Qf(qt, ds)}, {c}')
        return Lm
    def g2(b):
        Lm = []
        for dt in range(16):
            for qt in range(2):
                Lm.append(f'{MF} {O(dt, qt)}, {Vf(dt)}, {P[b][qt]}, {O(dt, qt)}')
        for qt in range(2):
            Lm.append(f'{MF} {L[qt]}, {ONES}, {P[b][qt]}, {L[qt]}')
        return Lm
    def softmax(b):
        G = []
        n = 0
        for kt in range(2):
            for qt in range(2):
                for h in range(2):
                    e0 = E[(2 * n) % 8]; e1 = E[(2 * n + 1) % 8]; n += 1
                    G.append([(f'v_exp_f32 {e0}, {S[b][kt][qt][2 * h]}', None), (f'v_exp_f32 {e1}, {S[b][kt][qt][2 * h + 1]}', None),
                              (f'v_cvt_pk_bf16_f32 {P[b][qt][kt * 2 + h]}, {e0}, {e1}', None)])
        return G
    NP1 = opt.get('np1', 6)
    def sm_flat(G):
        out = []
        for i, g in enumerate(G):
            out += g[:2]
            if i > 0: out.append(G[i - 1][2])
        if G: out.append(G[-1][2])
        return out
    def check(b):
        p = [P[b][0][j] for j in range(4)] + [P[b][1][j] for j in range(4)]
        return [(f'v_or3_b32 {chk}, {p[0]}, {p[1]}, {p[4]}', None), (f'v_or3_b32 {chk}, {chk}, {p[5]}, {p[2]}', None),
                (f'v_or3_b32 {chk}, {chk}, {p[3]}, {p[6]}', None), (f'v_bitop3_b32 {chk}, {chk}, {p[7]}, {msk} bitop3:0xa8', None),
                (f'v_cmp_ne_u32 vcc, 0, {chk}', None)]
    def rowmax_delta(b, init):
        for qt, d in ((0, t2), (1, t3)):
            a = S[b][0][qt]; c = S[b][1][qt]
            k(f'v_max3_f32 {d}, {a[0]}, {a[1]}, {a[2]}')
            k(f'v_max3_f32 {d}, {d}, {a[3]}, {c[0]}')
            k(f'v_max3_f32 {d}, {d}, {c[1]}, {c[2]}')
            k(f'v_max_f32 {d}, {d}, {c[3]}')
        for op in ('v_permlane32_swap_b32', 'v_permlane16_swap_b32'):
            k(f'v_mov_b32 {t0}, {t2}')
            k(f'v_mov_b32 {t1}, {t3}')
            k(f'{op} {t2}, {t0}')
            k(f'{op} {t3}, {t1}')
            k(f'v_max_f32 {t2}, {t2}, {t0}')
            k(f'v_max_f32 {t3}, {t3}, {t1}')
        for d in (t2, t3):
            k(f'v_add_f32 {d}, {hex(f2u(BIAS))}, {d}')
            if not init: k(f'v_max_f32 {d}, 0, {d}')
    def sub_delta(regs2):
        for kt in range(2):
            for qt, d in ((0, t2), (1, t3)):
                for j in range(4): k(f'v_sub_f32 {regs2[kt][qt][j]}, {regs2[kt][qt][j]}, {d}')
    def rescale(b, other_live, ret):
        rowmax_delta(b, False)
        sub_delta(S[b])
        if other_live: sub_delta(S[1 - b])
        sub_delta(NM)
        k(f'v_sub_f32 {ML[0]}, {ML[0]}, {t2}')
        k(f'v_sub_f32 {ML[2]}, {ML[2]}, {t3}')
        k(f'v_exp_f32 {t2}, -{t2}')
        k(f'v_exp_f32 {t3}, -{t3}')
        for dt in range(16):
            for qt, d in ((0, t2), (1, t3)):
                for j in range(4): k(f'v_mul_f32 {O(dt, qt)[j]}, {O(dt, qt)[j]}, {d}')
        for qt, d in ((0, t2), (1, t3)):
            for j in range(4): k(f'v_mul_f32 {L[qt][j]}, {L[qt][j]}, {d}')
        for x, _ in sm_flat(softmax(b)): k(x)
        k(f's_branch {ret}')
    def emit(lst):
        for x, tg in lst: k(x, tag=tg)
    def flat(items):
        out = []
        for it in items: out += it if isinstance(it, list) else [it]
        return out
    lab = lambda s, par: f'{name}_{s}{par}'

    if opt.get('pstamp'): stamp_at(k, 2)
    sync(first=True)
    if opt.get('pstamp'): stamp_at(k, 3)
    elif stamp: stamp_at(k, 0)
    emit(kreads(0)); emit(flat(dma_items(0)))
    k(f's_branch {lab("P", 1)}')

    for par in range(2):
        k.label(lab('P', par))
        k(f's_cmp_lg_u32 {sCnt}, 0')
        lskip = k.newlabel('nm')
        k(f's_cbranch_scc1 {lskip}')
        apply_mask()
        k.label(lskip)
        sync()
        lst, _ = pack(g1(par), [dict(items=dma_items(par), stride=2)])
        emit(lst)
        emit(kreads(par)); emit(rp_toggle(par))
        rowmax_delta(par, True)
        sub_delta(S[par]); sub_delta(NM)
        k(f'v_sub_f32 {ML[0]}, {ML[0]}, {t2}')
        k(f'v_sub_f32 {ML[2]}, {ML[2]}, {t3}')
        emit(sm_flat(softmax(par)[:NP1]))
        lnp = k.newlabel('np')
        k(f's_cmp_eq_u32 {sPend}, 0')
        k(f's_cbranch_scc1 {lnp}')
        k('s_waitcnt vmcnt(0)')
        k(f's_lshl_b32 s40, {shead}, 3')
        k(f's_add_u32 s40, s40, {spair}')
        k(f's_and_b32 s41, s40, 3')
        k(f's_lshl_b32 s41, s41, 3')
        k(f's_lshl_b32 s41, 1, s41')
        k(f's_and_b32 s40, s40, 0x7c')
        k(f'v_mov_b32 {t0}, s41')
        k('s_mov_b64 exec, 1')
        k(f'buffer_atomic_add {t0}, off, s[20:23], s40 sc1')
        k('s_mov_b64 exec, -1')
        k(f's_mov_b32 {sPend}, 0')
        k.label(lnp)
        k(f's_cmp_eq_u32 {sCnt}, 0')
        k(f's_cbranch_scc1 {lab("T", 1 - par)}')
        k(f's_mov_b32 {sPh}, 0')
        k(f's_sub_u32 {sCnt}, {sCnt}, 2')
        k(f's_cbranch_scc1 {lab("H", 1 - par)}')
        k(f's_branch {lab("M", 1 - par)}')

    for par in range(2):
        k.label(lab('H', par))
        k(f's_cmp_eq_u32 {sPh}, 1')
        k(f's_cbranch_scc1 {lab("T", par)}')
        k(f's_mov_b32 {sPh}, 1')
        k(f's_mov_b32 {sCnt}, 0')
        k(f's_cmp_eq_u32 {sDiag}, 0')
        k(f's_cbranch_scc1 {lab("M", par)}')
        apply_mask()
        k(f's_branch {lab("M", par)}')

    k.raw('.p2align 6')
    for par in range(2):
        k.label(lab('M', par))
        sync()
        dm = dma_items(par)
        nd1 = opt.get('nd1', 8)
        sm2 = sm_flat(softmax(1 - par)[NP1:]) + check(1 - par)
        lst, left = pack(g1(par), [dict(items=dm[:nd1], start=2, stride=opt.get('ds1', 4)), dict(items=vreads(par), stride=opt.get('rs', 1)), dict(items=sm2, start=opt.get('sm2', 0))])
        assert left == 0, left
        emit(lst)
        k('s_waitcnt lgkmcnt(0)')
        k(f's_cbranch_vccnz {lab("R", par)}')
        k.label(lab('Rr', par))
        lst, left = pack(g2(1 - par), [dict(items=dm[nd1:], start=1, stride=opt.get('ds2', 6)), dict(items=kreads(par) + rp_toggle(par), stride=opt.get('rs2', 2)), dict(items=sm_flat(softmax(par)[:NP1]), start=1)])
        assert left == 0, left
        emit(lst)
        k(f's_sub_u32 {sCnt}, {sCnt}, 1')
        k(f's_cbranch_scc1 {lab("H", 1 - par)}')
        if par == 1: k(f's_branch {lab("M", 0)}')

    for par in range(2):
        k.label(lab('R', par))
        rescale(1 - par, True, lab('Rr', par))
        k.label(lab('RT', par))
        rescale(1 - par, False, lab('RTr', par))

    for par in range(2):
        k.label(lab('T', par))
        sync()
        emit(vreads(par))
        lq = k.newlabel('nq')
        k(f's_cmp_eq_u32 {sNext}, 0')
        k(f's_cbranch_scc1 {lq}')
        qloads(spair)
        k.label(lq)
        emit(sm_flat(softmax(1 - par)[NP1:]) + check(1 - par))
        k(f's_cbranch_vccnz {lab("RT", par)}')
        k.label(lab('RTr', par))
        lst, left = pack(g2(1 - par), [dict(items=kreads(par) + rp_toggle(par), start=8), dict(items=dma_items(par), stride=2)])
        emit(lst)
        k(f's_branch {lab("I", 1 - par)}')
    for par in range(2):
        k.label(lab('I', par))
        k(f's_mov_b32 {sPar}, {par}')
        k(f's_sub_u32 {sIdle}, {sIdle}, 1')
        k(f's_cbranch_scc1 {name}_epi')
        sync()
        emit(kreads(par)); emit(rp_toggle(par)); emit(flat(dma_items(par)))
        if par == 1: k(f's_branch {lab("I", 0)}')

    k.label(f'{name}_epi')
    if stamp and not opt.get('pstamp'):
        l1 = k.newlabel('st'); l2 = k.newlabel('st')
        k(f's_cmp_eq_u32 {sNext}, 1')
        k(f's_cbranch_scc1 {l1}')
        stamp_at(k, 2)
        k(f's_branch {l2}')
        k.label(l1)
        stamp_at(k, 1)
        k.label(l2)
    lm, lst_ = k.newlabel('merge'), k.newlabel('store')
    k(f's_lshl_b32 s40, {shead}, 3')
    k(f's_add_u32 s40, s40, {spair}')
    k(f's_mul_i32 s42, s40, {PART_STRIDE}')
    k(f's_add_u32 s42, s42, {hex(WS_P)}')
    k(f's_lshl_b32 s41, {sw}, 14')
    k(f's_add_u32 s43, s42, s41')
    k(f's_cmp_eq_u32 {sMode}, 2')
    k(f's_cbranch_scc1 {lm}')
    sc = [T.sub(0, 2), T.sub(2, 2)]
    for qt in range(2):
        k(f'v_rcp_f32 {sc[qt][0]}, {L[qt][0]}')
    for qt in range(2):
        k(f'v_mov_b32 {sc[qt][1]}, {sc[qt][0]}')
    for dt in range(16):
        for qt in range(2):
            for j in (0, 2): k(f'v_pk_mul_f32 {O(dt, qt).sub(j, 2)}, {O(dt, qt).sub(j, 2)}, {sc[qt]}')
    k(f's_branch {lst_}')
    k.label(lm)
    k(f's_and_b32 s41, s40, 3')
    k(f's_lshl_b32 s41, s41, 3')
    k(f's_and_b32 s40, s40, 0x7c')
    lpoll = k.newlabel('poll')
    k('s_mov_b32 s57, 0')
    k.label(lpoll)
    k(f'buffer_load_dword {t0}, off, s[20:23], s40 sc1')
    k(f'v_readfirstlane_b32 s56, {t0}')
    k(f's_lshr_b32 s56, s56, s41')
    k(f's_and_b32 s56, s56, 0xff')
    k(f's_cmp_ge_u32 s56, 4')
    lgo = k.newlabel('go')
    k(f's_cbranch_scc1 {lgo}')
    k('s_sleep 4')
    k('s_add_u32 s57, s57, 1')
    k('s_cmp_lt_u32 s57, 0x40000')
    k(f's_cbranch_scc1 {lpoll}')
    k.label(lgo)
    k('s_barrier')
    k(f's_lshl_b32 s41, {sw}, 10')
    k(f's_add_u32 s41, s41, s42')
    k(f's_add_u32 s41, s41, 0x10000')
    k(f'buffer_load_dwordx4 {E.sub(0, 4)}, {l16}, s[16:19], s41 offen sc1')
    for n in range(16):
        if n % 4 == 0: k(f's_add_u32 s41, s43, {hex(n * 1024)}')
        k(f'buffer_load_dwordx4 {big.sub(n * 4, 4)}, {l16}, s[16:19], s41 offen offset:{(n % 4) * 1024} sc1')
    al = [T.sub(0, 2), T.sub(2, 2)]; be = [T.sub(4, 2), T.sub(6, 2)]
    for qt in range(2):
        nA = ML[2 * qt]; nB = E[2 * qt]; lB = E[2 * qt + 1]
        k(f'v_min_f32 {t0}, {nA}, {nB}')
        k(f'v_sub_f32 {t1}, {t0}, {nA}')
        k(f'v_sub_f32 {t2}, {t0}, {nB}')
        k(f'v_exp_f32 {t1}, {t1}')
        k(f'v_exp_f32 {t2}, {t2}')
        k(f'v_mul_f32 {t2}, {t2}, {lB}')
        k(f'v_fma_f32 {t0}, {t1}, {L[qt][0]}, {t2}')
        k(f'v_rcp_f32 {t0}, {t0}')
        k(f'v_mul_f32 {al[qt][0]}, {t1}, {t0}')
        k(f'v_mul_f32 {be[qt][0]}, {t2}, {t0}')
        k(f'v_mov_b32 {al[qt][1]}, {al[qt][0]}')
        k(f'v_mov_b32 {be[qt][1]}, {be[qt][0]}')
    for dt in range(16):
        for qt in range(2):
            for j in (0, 2): k(f'v_pk_mul_f32 {O(dt, qt).sub(j, 2)}, {O(dt, qt).sub(j, 2)}, {al[qt]}')
    for qt in range(2):
        for u in range(8):
            src = big.sub((qt * 8 + u) * 4, 4)
            for j in range(4):
                e = E.sub((j % 2) * 2, 2) if False else E.sub(4 + (j % 2) * 2, 2)
                k(f'v_lshlrev_b32 {e[0]}, 16, {src[j]}')
                k(f'v_and_b32 {e[1]}, 0xffff0000, {src[j]}')
                o = O(2 * u + j // 2, qt).sub((j % 2) * 2, 2)
                k(f'v_pk_fma_f32 {o}, {e}, {be[qt]}, {o}')
    k.label(lst_)
    k(f's_lshl_b32 s40, {sQb}, 3')
    k(f's_lshl_b32 s41, {sw}, 1')
    k(f's_add_u32 s40, s40, s41')
    k(f's_mul_i32 s40, s40, {184 * 1024}')
    k(f's_lshl_b32 s41, {shead}, 13')
    k(f's_add_u32 s40, s40, s41')
    k(f's_add_u32 s40, s40, {hex(WS_A)}')
    k(f's_cmp_eq_u32 {sMode}, 1')
    lpub = k.newlabel('pub'); lfin = k.newlabel('fin')
    k(f's_cbranch_scc1 {lpub}')
    def cvt_store(base, qstride, mod):
        n = 0
        for qt in range(2):
            for u in range(8):
                pk_ = big.sub((n % 8) * 4, 4); n += 1
                for j in range(4):
                    o = O(2 * u + j // 2, qt)
                    k(f'v_cvt_pk_bf16_f32 {pk_[j]}, {o[(j % 2) * 2]}, {o[(j % 2) * 2 + 1]}')
                if u % 4 == 0: k(f's_add_u32 s41, {base}, {hex(qt * qstride + u * 1024)}')
                k(f'buffer_store_dwordx4 {pk_}, {l16}, s[16:19], s41 offen offset:{(u % 4) * 1024}{mod}')
    cvt_store('s40', 184 * 1024, '')
    k(f's_branch {lfin}')
    k.label(lpub)
    cvt_store('s43', 8192, ' sc1')
    k(f'v_mov_b32 {ML[1]}, {L[0][0]}')
    k(f'v_mov_b32 {ML[3]}, {L[1][0]}')
    k(f's_lshl_b32 s41, {sw}, 10')
    k(f's_add_u32 s41, s41, s42')
    k(f's_add_u32 s41, s41, 0x10000')
    k(f'buffer_store_dwordx4 {ML}, {l16}, s[16:19], s41 offen sc1')
    k(f's_mov_b32 {sPend}, 1')
    k.label(lfin)
    k(f's_cmp_eq_u32 {sNext}, 0')
    k(f's_cbranch_scc1 {name}_done')
    k(f's_mov_b32 {sQb}, {spair}')
    k(f's_lshl_b32 {sU}, {spair}, 2')
    k(f's_add_u32 {sU}, {sU}, 4')
    k(f's_mov_b32 {sMode}, 0')
    k(f's_mov_b32 {sNext}, 0')
    k(f's_lshl_b32 {sEnd}, {sU}, 14')
    k(f's_mov_b32 {sJump}, {hex(HUGE)}')
    zero_state()
    seg_counts()
    k(f's_cmp_eq_u32 {sPar}, 0')
    k(f's_cbranch_scc1 {lab("P", 0)}')
    k(f's_branch {lab("P", 1)}')
    k.label(f'{name}_done')
    if stamp:
        if not opt.get('pstamp'): stamp_at(k, 3)
        stamp_end(k, 16, t0, t1)
    k.label(f'{name}_end')
    k('s_endpgm')
    k.finalize()
    return k

if __name__ == '__main__':
    for nm, opt in [('a', dict()), ('b', dict(rs=1.5, rs2=1.5, ds1=7, ds2=7, np1=5)), ('c', dict(pstamp=1))]:
        k = gen_k2(stamp=True, opt=opt)
        write_file(f'k2_{nm}.s', [('attn_kernel', 256, 256, 131072)], [k])
        print(k.stats(), k.maxregs())
```

```python
from common import *
from small import f2u, MF
def gen_k3(name='out_kernel', stamp=False, opt={}):
    R = opt.get('R', 6)
    k = Kernel(name); V = Alloc('v', 1, 256); A = Alloc('a', 0, 256)
    k('s_cmp_ge_u32 s2, 224')
    k(f's_cbranch_scc1 {name}_end')
    k(f's_load_dwordx2 s[4:5], s[0:1], {ARG["wo"]}')
    k(f's_load_dwordx2 s[6:7], s[0:1], {ARG["w4"]}')
    k(f's_load_dwordx2 s[8:9], s[0:1], {ARG["ws"]}')
    k(f's_load_dwordx2 s[10:11], s[0:1], {ARG["out"]}')
    if stamp: stamp_begin(k)
    lane = V(); t0 = V(); t1 = V(); t2 = V(); l16 = V()
    k(f'v_and_b32 {lane}, 63, v0')
    k(f'v_lshrrev_b32 {t0}, 6, v0')
    k(f'v_readfirstlane_b32 s24, {t0}')
    k(f'v_lshlrev_b32 {l16}, 4, {lane}')
    k('s_and_b32 s30, s2, 7')
    k('s_lshr_b32 s31, s2, 3')
    k('s_mul_i32 s32, s31, 37')
    k('s_lshr_b32 s32, s32, 8')
    k('s_mul_i32 s33, s32, 7')
    k('s_sub_u32 s26, s31, s33')
    k('s_lshl_b32 s25, s30, 2')
    k('s_add_u32 s25, s25, s32')
    vA = [V() for _ in range(4)]
    k(f's_mul_i32 s33, s25, {4 * 184 * 1024}')
    k(f's_add_u32 s33, s33, {hex(WS_A)}')
    k(f'v_add_u32 {vA[0]}, s33, {l16}')
    for rt in range(1, 4): k(f'v_add_u32 {vA[rt]}, {hex(rt * 184 * 1024)}, {vA[0]}')
    vW = [V() for _ in range(4)]
    k(f'v_lshrrev_b32 {t0}, 3, {lane}')
    k(f'v_mul_u32_u24 {t0}, 896, {t0}')
    k(f'v_bfe_u32 {t1}, {lane}, 1, 2')
    k(f'v_lshrrev_b32 {t2}, 4, {lane}')
    k(f'v_xor_b32 {t1}, {t1}, {t2}')
    k(f'v_lshl_add_u32 {t0}, {t1}, 5, {t0}')
    k(f'v_and_b32 {t1}, 1, {lane}')
    k(f'v_lshl_add_u32 {t0}, {t1}, 4, {t0}')
    k(f's_lshl_b32 s33, s26, 7')
    k(f'v_add_u32 {t0}, s33, {t0}')
    for i in range(4): k(f'v_add_u32 {vW[i]}, {hex(i * 8 * 896 - i * 1024)}, {t0}')
    k('s_waitcnt lgkmcnt(0)')
    srd(k, 12, 4, 4096 * 896)
    srd(k, 16, 6, 1792 * 896)
    srd(k, 20, 8, 256 * MB)
    srd(k, 36, 10, 2048 * 896)
    k('s_lshl_b32 s40, s24, 15')
    k(f's_mul_i32 s41, s24, {32 * 32 * 896}')
    k(f's_mul_i32 s42, s24, {R * 4096}')
    AF = [[A(4) for rt in range(4)] for _ in range(R)]
    N = 46
    def loads(n):
        L = []
        if n == 32:
            L.append([(f's_mul_i32 s40, s24, {14 * 1024}', None), (f's_add_u32 s40, s40, {hex(128 * 1024)}', None)])
            L.append([(f's_mul_i32 s41, s24, {14 * 32 * 896}', None)])
        sr = 12 if n < 32 else 16
        L.append([(f's_add_u32 m0, s42, {hex((n % R) * 4096)}', None)])
        for i in range(4):
            L.append([(f'buffer_load_dwordx4 {vW[i]}, s[{sr}:{sr + 3}], s41 offen offset:{i * 1024} lds', f'w{n % R}')])
        for rt in range(4):
            L.append([(f'buffer_load_dwordx4 {AF[n % R][rt]}, {vA[rt]}, s[20:23], s40 offen', None)])
        L.append([(f's_add_u32 s40, s40, 1024', None), (f's_add_u32 s41, s41, {32 * 896}', None)])
        return L
    for n in range(R - 1):
        for e in loads(n):
            for x, tg in e: k(x, tag=tg)
    rW = [V() for _ in range(4)]
    k(f'v_lshrrev_b32 {t0}, 2, {lane}')
    k(f'v_lshlrev_b32 {t0}, 7, {t0}')
    k(f'v_and_b32 {t1}, 3, {lane}')
    k(f'v_lshl_add_u32 {t0}, {t1}, 3, {t0}')
    k(f'v_add_u32 {t0}, s42, {t0}')
    k(f'v_bfe_u32 {t1}, {lane}, 3, 2')
    for nt in range(4):
        k(f'v_xor_b32 {t2}, {nt}, {t1}')
        k(f'v_lshl_add_u32 {rW[nt]}, {t2}, 5, {t0}')
    WF = [[A(4) for _ in range(4)] for _ in range(2)]
    acc = [[[V(4) for nt in range(4)] for rt in range(4)] for _ in range(2)]
    def reads(n):
        return [(f'ds_read_b64_tr_b16 {WF[n % 2][nt].sub(2 * j, 2)}, {rW[nt]} offset:{(n % R) * 4096 + j * 2048}', None) for nt in range(4) for j in range(2)]
    k.wait('w0')
    if stamp: stamp_at(k, 0)
    for x, _ in reads(0): k(x)
    G = V(4)
    for n in range(N):
        ac = acc[0 if n < 32 else 1]
        M = []
        for nt in range(4):
            for rt in range(4):
                c = '0' if n in (0, 32) else str(ac[rt][nt])
                M.append(f'{MF} {ac[rt][nt]}, {WF[n % 2][nt]}, {AF[n % R][rt]}, {c}')
        st = []
        if n + 1 < N:
            k.wait(f'w{(n + 1) % R}')
        k('s_waitcnt lgkmcnt(0)')
        if n + R - 1 < N: st.append(dict(items=loads(n + R - 1), stride=1))
        if n + 1 < N: st.append(dict(items=reads(n + 1), stride=1))
        if n == N - 3:
            it = [[(f'v_and_b32 {t0}, 15, {lane}', None)], [(f's_lshl_b32 s33, s25, 8', None), (f's_add_u32 s33, s33, {hex(WS_G)}', None)], [(f'v_lshlrev_b32 {t0}, 2, {t0}', None)]]
            it += [[(f'buffer_load_dword {G[rt]}, {t0}, s[20:23], s33 offen offset:{rt * 64}', None)] for rt in range(4)]
            st.append(dict(items=it, stride=1))
        lst, _ = pack(M, st)
        for x, tg in lst: k(x, tag=tg)
    if stamp: stamp_at(k, 1)
    X1 = V(8, 4); vo = V(); g1 = V()
    k(f'v_lshrrev_b32 {t0}, 2, v0')
    k(f's_lshl_b32 s33, s25, 6')
    k(f'v_add_u32 {t1}, s33, {t0}')
    k(f'v_mul_u32_u24 {vo}, 896, {t1}')
    k(f'v_and_b32 {t2}, 3, v0')
    k(f'v_lshl_add_u32 {vo}, {t2}, 5, {vo}')
    k(f's_lshl_b32 s34, s26, 7')
    k(f's_add_u32 s33, s34, {hex(WS_X1)}')
    for h in range(2): k(f'buffer_load_dwordx4 {X1.sub(4 * h, 4)}, {vo}, s[20:23], s33 offen offset:{h * 16}')
    k(f'v_lshlrev_b32 {t1}, 2, {t1}')
    k(f's_mov_b32 s33, {hex(WS_G)}')
    k(f'buffer_load_dword {g1}, {t1}, s[20:23], s33 offen')
    k('s_barrier')
    RS = 272; WSZ = 64 * RS
    wa = V()
    k(f'v_and_b32 {t0}, 15, {lane}')
    k(f'v_mul_u32_u24 {wa}, {RS}, {t0}')
    k(f'v_lshrrev_b32 {t0}, 4, {lane}')
    k(f'v_lshl_add_u32 {wa}, {t0}, 4, {wa}')
    k(f's_mul_i32 s33, s24, {WSZ}')
    k(f'v_add_u32 {wa}, s33, {wa}')
    for rt in range(4):
        k(f'v_sub_f32 {t0}, 1.0, {G[rt]}')
        for nt in range(4):
            for j in range(4):
                k(f'v_mul_f32 {acc[1][rt][nt][j]}, {acc[1][rt][nt][j]}, {t0}')
            for j in range(4):
                k(f'v_fma_f32 {acc[0][rt][nt][j]}, {acc[0][rt][nt][j]}, {G[rt]}, {acc[1][rt][nt][j]}')
            k(f'ds_write_b128 {wa}, {acc[0][rt][nt]} offset:{rt * 16 * RS + nt * 64}')
    k('s_waitcnt lgkmcnt(0)')
    k('s_barrier')
    ra = V()
    k(f'v_lshrrev_b32 {t0}, 2, v0')
    k(f'v_mul_u32_u24 {ra}, {RS}, {t0}')
    k(f'v_lshl_add_u32 {ra}, {t2}, 6, {ra}')
    Rr = [[acc[1][w][q] for q in range(4)] for w in range(4)]
    for w in range(4):
        for q in range(4): k(f'ds_read_b128 {Rr[w][q]}, {ra} offset:{w * WSZ + q * 16}')
    k(f'v_sub_f32 {g1}, 1.0, {g1}')
    PK = V(8, 4)
    for q in range(4):
        for j in range(4):
            k(f'v_add_f32 {Rr[0][q][j]}, {Rr[0][q][j]}, {Rr[1][q][j]}')
            k(f'v_add_f32 {Rr[2][q][j]}, {Rr[2][q][j]}, {Rr[3][q][j]}')
        for j in range(4):
            src = X1[q * 2 + j // 2]
            k(f'v_lshlrev_b32 {t0}, 16, {src}' if j % 2 == 0 else f'v_and_b32 {t0}, 0xffff0000, {src}')
            k(f'v_add_f32 {Rr[0][q][j]}, {Rr[0][q][j]}, {Rr[2][q][j]}')
            k(f'v_fma_f32 {Rr[0][q][j]}, {t0}, {g1}, {Rr[0][q][j]}')
        for h in range(2): k(f'v_cvt_pk_bf16_f32 {PK[q * 2 + h]}, {Rr[0][q][2 * h]}, {Rr[0][q][2 * h + 1]}')
    for h in range(2): k(f'buffer_store_dwordx4 {PK.sub(4 * h, 4)}, {vo}, s[36:39], s34 offen offset:{h * 16}')
    if stamp:
        stamp_at(k, 2); stamp_at(k, 3)
        stamp_end(k, 20, t0, t1)
    k.label(f'{name}_end')
    k('s_endpgm')
    k.finalize()
    return k
```

```python
MB = 1 << 20
WS_K = 0
WS_V = 16 * MB
WS_Q = 32 * MB
WS_A = 48 * MB
WS_H = 72 * MB
WS_X1 = 74 * MB
WS_G = 76 * MB
WS_ST = 77 * MB
WS_P = 80 * MB
ARG = dict(x=0, ckv=8, wq=16, wuk=24, wuv=32, wo=40, bx=48, w1=56, w2=64, w3=72, w4=80, gw=88, out=96, dbg=104, ws=112)
WS_CS = 78 * MB
```

```python
from common import *
import math, struct
def f2u(x): return struct.unpack('<I', struct.pack('<f', x))[0]
MF = 'v_mfma_f32_16x16x32_bf16'
LOG2E = math.log2(math.e)
GK0 = -2.0 * math.sqrt(2.0 / math.pi) * LOG2E
GK1 = GK0 * 0.044715

def gelu(k, x, t, sK0, sK1):
    n = len(x)
    for i in range(n): k(f'v_mul_f32 {t[i]}, {x[i]}, {x[i]}')
    for i in range(n): k(f'v_fma_f32 {t[i]}, {t[i]}, {sK1}, {sK0}')
    for i in range(n): k(f'v_mul_f32 {t[i]}, {t[i]}, {x[i]}')
    for i in range(n): k(f'v_exp_f32 {t[i]}, {t[i]}')
    for i in range(n): k(f'v_add_f32 {t[i]}, 1.0, {t[i]}')
    for i in range(n): k(f'v_rcp_f32 {t[i]}, {t[i]}')
    for i in range(n): k(f'v_mul_f32 {x[i]}, {x[i]}, {t[i]}')

def xlane_sum(k, vals, tmps):
    for op in ('v_permlane32_swap_b32', 'v_permlane16_swap_b32'):
        for v, t in zip(vals, tmps): k(f'v_mov_b32 {t}, {v}')
        for v, t in zip(vals, tmps): k(f'{op} {v}, {t}')
        for v, t in zip(vals, tmps): k(f'v_add_f32 {v}, {v}, {t}')

class WSlab:
    def __init__(self, k, V, NC, rowstride, lane, sw, ldsbase=0):
        self.k = k; self.NC = NC; self.rb = NC * 2; self.slab = 32 * self.rb; self.rowstride = rowstride
        self.ldsbase = ldsbase
        self.rows_per = 1024 // self.rb
        self.per_slab = 32 // self.rows_per
        self.lane = lane; self.sw = sw; self.V = V
    def setup_dma(self, scol, t0, t1, t2):
        k = self.k; lane = self.lane; V = self.V
        lpr = self.rb // 16
        sh = int(math.log2(lpr))
        self.vd = V()
        k(f'v_lshrrev_b32 {t0}, {sh}, {lane}')
        k(f's_mul_i32 s40, {self.sw}, {self.rows_per}')
        k(f'v_add_u32 {t0}, s40, {t0}')
        if self.NC == 128:
            k(f'v_and_b32 {t1}, 3, {t0}')
            k(f'v_bfe_u32 {t2}, {t0}, 3, 1')
            k(f'v_lshl_or_b32 {t1}, {t2}, 2, {t1}')
        elif self.NC == 32:
            k(f'v_bfe_u32 {t1}, {t0}, 3, 1')
        else: raise ValueError
        k(f'v_bfe_u32 {t2}, {lane}, 1, {sh - 1}')
        k(f'v_xor_b32 {t1}, {t1}, {t2}')
        k(f'v_lshlrev_b32 {t1}, 5, {t1}')
        k(f'v_and_b32 {t2}, 1, {lane}')
        k(f'v_lshl_or_b32 {t1}, {t2}, 4, {t1}')
        k(f's_mov_b32 s40, {self.rowstride}')
        k(f'v_mul_lo_u32 {t0}, {t0}, s40')
        k(f'v_add3_u32 {self.vd}, {t0}, {t1}, {scol}')
    def dma(self, srd_s, tagf):
        k = self.k
        n = 14 * self.per_slab // 4
        k(f's_lshl_b32 s41, {self.sw}, 10')
        k(f's_mov_b32 s40, 0')
        for i in range(n):
            k(f's_add_u32 m0, s41, {hex(self.ldsbase + i * 4096)}')
            k(f'buffer_load_dwordx4 {self.vd}, s[{srd_s}:{srd_s + 3}], s40 offen lds', tag=tagf(i))
            if i + 1 < n: k(f's_add_u32 s40, s40, {4 * self.rows_per * self.rowstride}')
    def setup_read(self, t0, t1, t2):
        k = self.k; lane = self.lane; V = self.V
        nnt = self.NC // 16
        self.rd = [V() for _ in range(nnt)]
        k(f'v_lshrrev_b32 {t0}, 4, {lane}')
        k(f'v_bfe_u32 {t1}, {lane}, 2, 2')
        k(f'v_lshl_add_u32 {t0}, {t0}, 3, {t1}')
        k(f'v_lshlrev_b32 {t0}, {int(math.log2(self.rb))}, {t0}')
        k(f'v_and_b32 {t1}, 3, {lane}')
        k(f'v_lshl_add_u32 {t0}, {t1}, 3, {t0}')
        if self.ldsbase: k(f'v_add_u32 {t0}, {hex(self.ldsbase)}, {t0}')
        if self.NC == 128: k(f'v_bfe_u32 {t1}, {lane}, 2, 3')
        else: k(f'v_bfe_u32 {t1}, {lane}, 4, 1')
        for nt in range(nnt):
            k(f'v_xor_b32 {t2}, {nt}, {t1}')
            k(f'v_lshl_add_u32 {self.rd[nt]}, {t2}, 5, {t0}')
    def reads(self, s, nt, dst, hi=None):
        off = s * self.slab
        reg = self.rd[nt]
        if off + 4 * self.rb >= 65536:
            off -= 65536 - 65536 % self.slab if False else self.HI
            reg = self.rdhi[nt]
        return [(f'ds_read_b64_tr_b16 {dst.sub(2 * j, 2)}, {reg} offset:{off + 4 * j * self.rb}', None) for j in range(2)]
    def setup_hi(self):
        self.HI = 7 * self.slab
        self.rdhi = [self.V() for _ in self.rd]
        for a, b in zip(self.rdhi, self.rd): self.k(f'v_add_u32 {a}, {hex(self.HI)}, {b}')

def act_loads(k, X, vaddr, srd_s, soff, mod=''):
    for s in range(14):
        for rt in range(2):
            v, imm = vaddr(s, rt)
            k(f'buffer_load_dwordx4 {X[rt][s]}, {v}, s[{srd_s}:{srd_s + 3}], {soff} offen offset:{imm}{mod}')

def prologue(k, name, V, nwg):
    k(f's_cmp_ge_u32 s2, {nwg}')
    k(f's_cbranch_scc1 {name}_end')
    lane = V(); t0 = V()
    k(f'v_and_b32 {lane}, 63, v0')
    k(f'v_lshrrev_b32 {t0}, 6, v0')
    k(f'v_readfirstlane_b32 s24, {t0}')
    V.release(t0)
    return lane

def row_addr(k, V, lane, srow0, t0):
    va = [V(), V()]
    k(f'v_and_b32 {t0}, 15, {lane}')
    k(f's_lshl_b32 s40, s24, 5')
    k(f's_add_u32 s40, s40, {srow0}')
    k(f'v_add_u32 {t0}, s40, {t0}')
    k(f'v_mul_u32_u24 {va[0]}, 896, {t0}')
    k(f'v_lshrrev_b32 {t0}, 4, {lane}')
    k(f'v_lshl_add_u32 {va[0]}, {t0}, 4, {va[0]}')
    k(f'v_add_u32 {va[1]}, {16 * 896}, {va[0]}')
    return va

def gemm_resident(k, W, X, acc, WF, nnt, extra=None, waitf=None):
    def rd(s): return [x for nt in range(nnt) for x in W.reads(s, nt, WF[s % 2][nt])]
    if waitf: waitf(0)
    for x, _ in rd(0): k(x)
    for s in range(14):
        M = []
        for nt in range(nnt):
            for rt in range(2):
                c = '0' if s == 0 else str(acc[rt][nt])
                M.append(f'{MF} {acc[rt][nt]}, {WF[s % 2][nt]}, {X[rt][s]}, {c}')
        if extra: M += extra(s)
        st = []
        if s + 1 < 14:
            if waitf: waitf(s + 1)
            st.append(dict(items=rd(s + 1), stride=1))
        lst, _ = pack(M, st)
        for x, tg in lst: k(x, tag=tg)

def gen_a(name='a_kernel'):
    k = Kernel(name); V = Alloc('v', 1, 256)
    lane = prologue(k, name, V, 256)
    k(f's_load_dwordx2 s[4:5], s[0:1], {ARG["x"]}')
    k(f's_load_dwordx2 s[6:7], s[0:1], {ARG["w1"]}')
    k(f's_load_dwordx2 s[8:9], s[0:1], {ARG["ws"]}')
    k(f's_load_dwordx2 s[10:11], s[0:1], {ARG["w3"]}')
    k(f's_load_dwordx2 s[28:29], s[0:1], {ARG["gw"]}')
    k('s_and_b32 s25, s2, 15')
    k('s_lshr_b32 s26, s2, 4')
    k('s_lshl_b32 s27, s26, 7')
    t0 = V(); t1 = V(); t2 = V(); t3 = V()
    va = row_addr(k, V, lane, 's27', t0)
    k('s_waitcnt lgkmcnt(0)')
    srd(k, 12, 4, 2048 * 896)
    srd(k, 20, 8, 256 * MB)
    X = [[V(4) for s in range(14)] for rt in range(2)]
    ones = V(4)
    for j in range(4): k(f'v_mov_b32 {ones[j]}, 0x3f803f80')
    k('s_cmp_ge_u32 s25, 14')
    k(f's_cbranch_scc1 {name}_side')
    srd(k, 16, 6, 448 * 896)
    W = WSlab(k, V, 32, 896, lane, 's24')
    k('s_lshl_b32 s30, s25, 6')
    W.setup_dma('s30', t0, t1, t2)
    W.dma(16, lambda i: 'w')
    act_loads(k, X, lambda s, rt: (va[rt], s * 64), 12, 0)
    W.setup_read(t0, t1, t2)
    WF = [[V(4) for _ in range(2)] for _ in range(2)]
    acc = [[V(4) for _ in range(2)] for _ in range(2)]
    cs = [V(4), V(4)]; rs = [V(4), V(4)]; sq = [V(), V()]
    k.wait('w'); k('s_barrier')
    def extra(s):
        M = []
        for nt in range(2): M.append(f'{MF} {cs[nt]}, {WF[s % 2][nt]}, {ones}, {"0" if s == 0 else cs[nt]}')
        for rt in range(2): M.append(f'{MF} {rs[rt]}, {ones}, {X[rt][s]}, {"0" if s == 0 else rs[rt]}')
        return M
    gemm_resident(k, W, X, acc, WF, 2, extra)
    for rt in range(2):
        k(f'v_mov_b32 {sq[rt]}, 0')
    for s in range(14):
        for j in range(4):
            for rt in range(2): k(f'v_dot2c_f32_bf16 {sq[rt]}, {X[rt][s][j]}, {X[rt][s][j]}')
    k('s_nop 3')
    xlane_sum(k, sq, [t0, t1])
    k(f's_mov_b32 s30, {hex(f2u(1.0 / 448))}')
    k(f's_mov_b32 s31, {hex(f2u(GK1))}')
    k(f'v_mov_b32 {t3}, {hex(f2u(GK0))}')
    T = V(8)
    for rt in range(2):
        mu = rs[rt][0]; rstd = rs[rt][1]
        k(f'v_mul_f32 {mu}, s30, {mu}')
        k(f'v_mul_f32 {t0}, {mu}, {mu}')
        k(f'v_fma_f32 {t0}, {sq[rt]}, s30, -{t0}')
        k(f'v_max_f32 {t0}, 0, {t0}')
        k(f'v_add_f32 {t0}, {hex(f2u(1e-5))}, {t0}')
        k(f'v_rsq_f32 {rstd}, {t0}')
        xs = [acc[rt][nt][j] for nt in range(2) for j in range(4)]
        cc = [cs[nt][j] for nt in range(2) for j in range(4)]
        for x, c in zip(xs, cc): k(f'v_fma_f32 {x}, -{mu}, {c}, {x}')
        for x in xs: k(f'v_mul_f32 {x}, {x}, {rstd}')
        gelu(k, xs, [T[i] for i in range(8)], t3, 's31')
        for nt in range(2):
            k(f'v_cvt_pk_bf16_f32 {T[2 * nt]}, {acc[rt][nt][0]}, {acc[rt][nt][1]}')
            k(f'v_cvt_pk_bf16_f32 {T[2 * nt + 1]}, {acc[rt][nt][2]}, {acc[rt][nt][3]}')
        k(f'v_lshrrev_b32 {t0}, 4, {lane}')
        k(f'v_lshlrev_b32 {t0}, 3, {t0}')
        k(f'v_sub_u32 {t0}, {va[rt]}, {t0}')
        k(f's_lshl_b32 s32, s25, 6')
        k(f's_add_u32 s32, s32, {hex(WS_H)}')
        for nt in range(2):
            k(f'buffer_store_dwordx2 {T.sub(2 * nt, 2)}, {t0}, s[20:23], s32 offen offset:{nt * 32}')
    k('s_endpgm')
    k.label(f'{name}_side')
    k('s_cmp_eq_u32 s25, 15')
    k(f's_cbranch_scc1 {name}_cs')
    srd(k, 16, 28, 896)
    act_loads(k, X, lambda s, rt: (va[rt], s * 64), 12, 0)
    G = [V(4) for _ in range(14)]
    k(f'v_lshrrev_b32 {t0}, 4, {lane}')
    k(f'v_lshlrev_b32 {t0}, 4, {t0}')
    for s in range(14): k(f'buffer_load_dwordx4 {G[s]}, {t0}, s[16:19], 0 offen offset:{s * 64}')
    for s in range(14):
        for rt in range(2): k(f'{MF} {rs[rt]}, {G[s]}, {X[rt][s]}, {"0" if s == 0 else rs[rt]}')
    k(f'v_and_b32 {t0}, 15, {lane}')
    k(f's_lshl_b32 s40, s24, 5')
    k(f's_add_u32 s40, s40, s27')
    k(f'v_add_u32 {t0}, s40, {t0}')
    k(f'v_lshlrev_b32 {t0}, 2, {t0}')
    k(f's_mov_b32 s32, {hex(WS_G)}')
    for rt in range(2):
        g = rs[rt][0]
        k(f'v_mul_f32 {g}, {hex(f2u(-LOG2E))}, {g}')
        k(f'v_exp_f32 {g}, {g}')
        k(f'v_add_f32 {g}, 1.0, {g}')
        k(f'v_rcp_f32 {g}, {g}')
        k(f'buffer_store_dword {g}, {t0}, s[20:23], s32 offen offset:{rt * 64}')
    k('s_endpgm')
    k.label(f'{name}_cs')
    V.release(*G)
    k('s_cmp_ge_u32 s26, 14')
    k(f's_cbranch_scc1 {name}_end')
    srd(k, 16, 10, 448 * 3584)
    W3 = WSlab(k, V, 128, 3584, lane, 's24')
    k('s_lshl_b32 s30, s26, 8')
    W3.setup_dma('s30', t0, t1, t2)
    W3.dma(16, lambda i: 'w3')
    W3.setup_read(t0, t1, t2)
    k('s_lshl_b32 s30, s24, 6')
    for nt in range(2): k(f'v_xor_b32 {W3.rd[nt]}, s30, {W3.rd[nt]}')
    W3.rd = W3.rd[:2]
    W3.setup_hi()
    k.wait('w3'); k('s_barrier')
    for s in range(14):
        for nt in range(2):
            for x, _ in W3.reads(s, nt, X[nt][s]): k(x)
    for s in range(14):
        for nt in range(2): k(f'{MF} {cs[nt]}, {X[nt][s]}, {ones}, {"0" if s == 0 else cs[nt]}')
    k(f'v_lshrrev_b32 {t0}, 4, {lane}')
    k(f'v_lshlrev_b32 {t0}, 4, {t0}')
    k(f's_lshl_b32 s32, s26, 9')
    k(f's_lshl_b32 s33, s24, 7')
    k(f's_add_u32 s32, s32, s33')
    k(f's_add_u32 s32, s32, {hex(WS_CS)}')
    for nt in range(2): k(f'buffer_store_dwordx4 {cs[nt]}, {t0}, s[20:23], s32 offen offset:{nt * 64}')
    k.label(f'{name}_end')
    k('s_endpgm')
    k.finalize()
    return k

def gen_b(name='b_kernel'):
    k = Kernel(name); V = Alloc('v', 1, 256)
    lane = prologue(k, name, V, 256)
    k(f's_load_dwordx2 s[4:5], s[0:1], {ARG["x"]}')
    k(f's_load_dwordx2 s[6:7], s[0:1], {ARG["w2"]}')
    k(f's_load_dwordx2 s[8:9], s[0:1], {ARG["ws"]}')
    k('s_and_b32 s25, s2, 15')
    k('s_lshr_b32 s26, s2, 4')
    k('s_lshl_b32 s27, s26, 7')
    k('s_cmp_ge_u32 s25, 14')
    k(f's_cbranch_scc1 {name}_end')
    t0 = V(); t1 = V(); t2 = V(); t3 = V()
    va = row_addr(k, V, lane, 's27', t0)
    k('s_waitcnt lgkmcnt(0)')
    srd(k, 12, 4, 2048 * 896)
    srd(k, 16, 6, 448 * 896)
    srd(k, 20, 8, 256 * MB)
    srd(k, 28, 8, 2048 * 896, add=hex(WS_H))
    W = WSlab(k, V, 32, 896, lane, 's24')
    k('s_lshl_b32 s32, s25, 6')
    W.setup_dma('s32', t0, t1, t2)
    W.dma(16, lambda i: 'w')
    X = [[V(4) for s in range(14)] for rt in range(2)]
    dl = [-1, 1, -2, 2]
    vg = [[V() for rt in range(2)] for _ in range(6)]
    for rt in range(2):
        for gi in range(4):
            k(f'v_add_u32 {vg[gi][rt]}, {hex((dl[gi] * 896) & 0xffffffff)}, {va[rt]}')
    k(f'v_cmp_gt_u32 vcc, 32, {lane}')
    for rt in range(2):
        k(f'v_cndmask_b32 {vg[4][rt]}, {vg[1][rt]}, {vg[0][rt]}, vcc')
        k(f'v_cndmask_b32 {vg[5][rt]}, {vg[3][rt]}, {vg[2][rt]}, vcc')
    def va_s(s, rt):
        gi = 4 if s == 3 else 5 if s == 10 else (4 * s) // 14
        return vg[gi][rt], s * 64
    act_loads(k, X, va_s, 28, 0)
    XR = [[V(2) for _ in range(2)] for _ in range(2)]
    vo = [V(), V()]
    k(f'v_lshrrev_b32 {t0}, 4, {lane}')
    k(f'v_lshlrev_b32 {t0}, 3, {t0}')
    for rt in range(2):
        k(f'v_sub_u32 {vo[rt]}, {va[rt]}, {t0}')
        for nt in range(2): k(f'buffer_load_dwordx2 {XR[rt][nt]}, {vo[rt]}, s[12:15], s32 offen offset:{nt * 32}')
    W.setup_read(t0, t1, t2)
    WF = [[V(4) for _ in range(2)] for _ in range(2)]
    acc = [[V(4) for _ in range(2)] for _ in range(2)]
    k.wait('w'); k('s_barrier')
    gemm_resident(k, W, X, acc, WF, 2)
    T = V(8); st = [V(2), V(2)]
    k(f's_add_u32 s33, s32, {hex(WS_X1)}')
    for rt in range(2):
        for nt in range(2):
            a = acc[rt][nt]
            k(f'v_cvt_pk_bf16_f32 {T[0]}, {a[0]}, {a[1]}')
            k(f'v_cvt_pk_bf16_f32 {T[1]}, {a[2]}, {a[3]}')
            for h in range(2):
                k(f'v_lshlrev_b32 {a[2 * h]}, 16, {T[h]}')
                k(f'v_and_b32 {a[2 * h + 1]}, 0xffff0000, {T[h]}')
                k(f'v_lshlrev_b32 {T[2]}, 16, {XR[rt][nt][h]}')
                k(f'v_and_b32 {T[3]}, 0xffff0000, {XR[rt][nt][h]}')
                k(f'v_add_f32 {a[2 * h]}, {a[2 * h]}, {T[2]}')
                k(f'v_add_f32 {a[2 * h + 1]}, {a[2 * h + 1]}, {T[3]}')
                k(f'v_cvt_pk_bf16_f32 {XR[rt][nt][h]}, {a[2 * h]}, {a[2 * h + 1]}')
            k(f'buffer_store_dwordx2 {XR[rt][nt]}, {vo[rt]}, s[20:23], s33 offen offset:{nt * 32}')
        k(f'v_mov_b32 {st[rt][0]}, 0'); k(f'v_mov_b32 {st[rt][1]}, 0')
        k(f'v_mov_b32 {T[4]}, 0x3f803f80')
        for nt in range(2):
            for h in range(2):
                k(f'v_dot2c_f32_bf16 {st[rt][0]}, {XR[rt][nt][h]}, {T[4]}')
                k(f'v_dot2c_f32_bf16 {st[rt][1]}, {XR[rt][nt][h]}, {XR[rt][nt][h]}')
    k('s_nop 3')
    xlane_sum(k, [st[0][0], st[0][1], st[1][0], st[1][1]], [T[0], T[1], T[2], T[3]])
    k(f'v_and_b32 {t0}, 15, {lane}')
    k(f's_lshl_b32 s40, s24, 5')
    k(f's_add_u32 s40, s40, s27')
    k(f'v_add_u32 {t0}, s40, {t0}')
    k(f'v_lshlrev_b32 {t0}, 7, {t0}')
    k(f's_lshl_b32 s33, s25, 3')
    k(f's_add_u32 s33, s33, {hex(WS_ST)}')
    for rt in range(2): k(f'buffer_store_dwordx2 {st[rt]}, {t0}, s[20:23], s33 offen offset:{rt * 2048}')
    k.label(f'{name}_end')
    k('s_endpgm')
    k.finalize()
    return k

def gen_c(name='c_kernel', isQ=False):
    k = Kernel(name); V = Alloc('v', 1, 256); A = Alloc('a', 0, 256)
    lane = prologue(k, name, V, 512 if isQ else 256)
    k(f's_load_dwordx2 s[4:5], s[0:1], {ARG["x"]}')
    k(f's_load_dwordx2 s[6:7], s[0:1], {ARG["wq" if isQ else "w3"]}')
    k(f's_load_dwordx2 s[8:9], s[0:1], {ARG["ws"]}')
    if isQ:
        k('s_and_b32 s25, s2, 31'); k('s_lshr_b32 s26, s2, 5')
    else:
        k('s_and_b32 s25, s2, 15'); k('s_lshr_b32 s26, s2, 4')
        k('s_cmp_ge_u32 s25, 14')
        k(f's_cbranch_scc1 {name}_end')
    k('s_lshl_b32 s27, s26, 7')
    t0 = V(); t1 = V(); t2 = V(); t3 = V()
    va = row_addr(k, V, lane, 's27', t0)
    k('s_waitcnt lgkmcnt(0)')
    rs_ = 8192 if isQ else 3584
    if isQ: srd(k, 12, 4, 2048 * 896)
    else: srd(k, 12, 8, 2048 * 896, add=hex(WS_X1))
    srd(k, 16, 6, 448 * rs_)
    srd(k, 20, 8, 256 * MB)
    W = WSlab(k, V, 128, rs_, lane, 's24')
    k('s_lshl_b32 s32, s25, 8')
    W.setup_dma('s32', t0, t1, t2)
    X = [[A(4) for s in range(14)] for rt in range(2)]
    act_loads(k, X, lambda s, rt: (va[rt], s * 64), 12, 0)
    W.dma(16, lambda i: f'w{i // 4}')
    W.setup_read(t0, t1, t2); W.setup_hi()
    WF = [[A(4) for _ in range(8)] for _ in range(2)]
    acc = [[V(4) for _ in range(8)] for _ in range(2)]
    if not isQ:
        SP = [V(8), V(8)]; CS = [V(4) for _ in range(8)]
        k(f'v_and_b32 {t0}, 15, {lane}')
        k(f's_lshl_b32 s40, s24, 5')
        k(f's_add_u32 s40, s40, s27')
        k(f'v_add_u32 {t0}, s40, {t0}')
        k(f'v_lshlrev_b32 {t0}, 7, {t0}')
        k(f'v_lshrrev_b32 {t1}, 4, {lane}')
        k(f'v_lshl_add_u32 {t0}, {t1}, 5, {t0}')
        k(f's_mov_b32 s33, {hex(WS_ST)}')
        for rt in range(2):
            for h in range(2): k(f'buffer_load_dwordx4 {SP[rt].sub(4 * h, 4)}, {t0}, s[20:23], s33 offen offset:{rt * 2048 + h * 16}')
        k(f'v_lshlrev_b32 {t1}, 4, {t1}')
        k(f's_lshl_b32 s33, s25, 9')
        k(f's_add_u32 s33, s33, {hex(WS_CS)}')
        for nt in range(8): k(f'buffer_load_dwordx4 {CS[nt]}, {t1}, s[20:23], s33 offen offset:{nt * 64}')
    def waitf(s):
        if s % 2 == 0:
            k.wait(f'w{s // 2}'); k('s_barrier')
    gemm_resident(k, W, X, acc, WF, 8, waitf=waitf)
    l16 = V(); T = V(8); PK = [V(4), V(4)]
    k(f'v_lshlrev_b32 {l16}, 4, {lane}')
    if isQ:
        k('s_lshr_b32 s33, s25, 1'); k('s_lshl_b32 s33, s33, 20')
        k('s_lshl_b32 s34, s26, 16'); k('s_add_u32 s33, s33, s34')
        k('s_lshl_b32 s34, s24, 14'); k('s_add_u32 s33, s33, s34')
        k('s_and_b32 s34, s25, 1'); k('s_lshl_b32 s34, s34, 12'); k('s_add_u32 s33, s33, s34')
        k(f's_add_u32 s33, s33, {hex(WS_Q)}')
        k(f's_mov_b32 s31, {hex(f2u(LOG2E / 16))}')
        rstride = 8192
    else:
        k('s_lshl_b32 s33, s26, 3'); k('s_lshl_b32 s34, s24, 1'); k('s_add_u32 s33, s33, s34')
        k(f's_mul_i32 s33, s33, {184 * 1024}')
        k('s_lshl_b32 s34, s25, 12'); k('s_add_u32 s33, s33, s34')
        k(f's_add_u32 s33, s33, {hex(WS_A + 128 * 1024)}')
        rstride = 184 * 1024
        k(f's_mov_b32 s30, {hex(f2u(1.0 / 448))}')
        k(f's_mov_b32 s31, {hex(f2u(GK1))}')
        k(f'v_mov_b32 {t3}, {hex(f2u(GK0))}')
        k(f'v_cmp_gt_u32 vcc, 48, {lane}')
        for rt in range(2):
            for j in range(4, 8): k(f'v_cndmask_b32 {SP[rt][j]}, 0, {SP[rt][j]}, vcc')
            for j in range(2):
                k(f'v_add_f32 {SP[rt][j]}, {SP[rt][j]}, {SP[rt][2 + j]}')
                k(f'v_add_f32 {SP[rt][4 + j]}, {SP[rt][4 + j]}, {SP[rt][6 + j]}')
                k(f'v_add_f32 {SP[rt][j]}, {SP[rt][j]}, {SP[rt][4 + j]}')
        xlane_sum(k, [SP[0][0], SP[0][1], SP[1][0], SP[1][1]], [T[0], T[1], T[2], T[3]])
        for rt in range(2):
            mu = SP[rt][0]; rstd = SP[rt][1]
            k(f'v_mul_f32 {mu}, s30, {mu}')
            k(f'v_mul_f32 {t0}, {mu}, {mu}')
            k(f'v_fma_f32 {t0}, {rstd}, s30, -{t0}')
            k(f'v_max_f32 {t0}, 0, {t0}')
            k(f'v_add_f32 {t0}, {hex(f2u(1e-5))}, {t0}')
            k(f'v_rsq_f32 {rstd}, {t0}')
    for rt in range(2):
        if rt: k(f's_add_u32 s33, s33, {hex(rstride)}')
        for u in range(4):
            xs = [acc[rt][2 * u + i][j] for i in range(2) for j in range(4)]
            if isQ:
                for x in xs: k(f'v_mul_f32 {x}, s31, {x}')
            else:
                cc = [CS[2 * u + i][j] for i in range(2) for j in range(4)]
                for x, c in zip(xs, cc): k(f'v_fma_f32 {x}, -{SP[rt][0]}, {c}, {x}')
                for x in xs: k(f'v_mul_f32 {x}, {x}, {SP[rt][1]}')
                gelu(k, xs, [T[i] for i in range(8)], t3, 's31')
            p = PK[u % 2]
            for j in range(4): k(f'v_cvt_pk_bf16_f32 {p[j]}, {xs[2 * j]}, {xs[2 * j + 1]}')
            k(f'buffer_store_dwordx4 {p}, {l16}, s[20:23], s33 offen offset:{u * 1024}')
    k.label(f'{name}_end')
    k('s_endpgm')
    k.finalize()
    return k

if __name__ == '__main__':
    ks = [gen_c('q_kernel', True), gen_a(), gen_b(), gen_c()]
    for k in ks: print(k.name, k.stats(), k.maxregs())
    write_file('small.s', [('q_kernel', 512, 256, 114688), ('a_kernel', 256, 256, 114688), ('b_kernel', 256, 256, 28672), ('c_kernel', 256, 256, 114688)], ks)
```

```python
import sys
from common import *
import k1c, k2, k3, small
stamp = len(sys.argv) > 2
head = open('gated_mix__compressed_kv_cla__mixer_s_mlp__prompt.s.ref').read().split('; Override')[0]
ks = [k1c.gen_k1(), small.gen_c('q_kernel', True), small.gen_a(), small.gen_b(), small.gen_c(), k2.gen_k2(), k3.gen_k3(stamp=stamp)]
L = [('kv_kernel', 256, 256, 131072), ('q_kernel', 512, 256, 114688), ('a_kernel', 256, 256, 114688), ('b_kernel', 256, 256, 28672), ('c_kernel', 256, 256, 114688), ('attn_kernel', 256, 256, 131072), ('out_kernel', 224, 256, 98304)]
s = write_file(sys.argv[1], L, ks, head=head)
print(len(s), 'bytes')
for k in ks: print(k.name, k.maxregs(), sum(k.stats().values()))
```

```python
from asmdsl import *
from layout import *

def srd(k, s, base, nbytes, add=None):
    if add is None:
        k(f's_mov_b32 s{s}, s{base}')
        k(f's_and_b32 s{s+1}, s{base+1}, 0xffff')
    else:
        k(f's_add_u32 s{s}, s{base}, {add}')
        k(f's_addc_u32 s{s+1}, s{base+1}, 0')
        k(f's_and_b32 s{s+1}, s{s+1}, 0xffff')
    k(f's_mov_b32 s{s+2}, {hex(nbytes)}')
    k(f's_mov_b32 s{s+3}, 0x20000')

def cost(text):
    op = text.split()[0]
    if op in TRANS: return 2
    return 1

def klass(text):
    op = text.split()[0]
    if op.startswith('s_'): return 's'
    if op.startswith('ds_') or op.startswith('buffer_') or op.startswith('global_'): return 'm'
    if op in TRANS: return 't'
    return 'v'

def pack(main, streams, v2=True):
    out = []
    pos = [0] * len(streams)
    nxt = [float(s.get('start', 0)) for s in streams]
    forced = 0
    prev_v2 = False
    for gi, m in enumerate(main):
        for si, s in enumerate(streams):
            n = s.get('by', {}).get(gi)
            while n is not None and pos[si] < min(n, len(s['items'])):
                it = s['items'][pos[si]]
                out += it if isinstance(it, list) else [it]
                pos[si] += 1; forced += 1
        out.append((m, None))
        S = []; M = []; Vv = []; Tt = []
        rank = [-1] * len(streams)
        def try_place(si, allowed):
            s = streams[si]
            if pos[si] >= len(s['items']): return False
            it = s['items'][pos[si]]
            grp = it if isinstance(it, list) else [it]
            c = klass(grp[0][0])
            assert len(grp) == 1 or all(klass(x[0]) == 's' for x in grp), grp
            if c not in allowed: return False
            st = s.get('stride', 0)
            if 'gate' in s and not s['gate'](gi, pos[si]): return False
            nvec = len(M) + len(Vv) + 2 * len(Tt)
            if c == 's':
                if gi < s.get('start', 0) - 1 or rank[si] > 0 or Tt: return False
                if len(S) + len(grp) + nvec > 3: return False
                S.extend(grp); rank[si] = 0
            else:
                if gi < int(nxt[si]): return False
                if c == 'm':
                    if M or Tt or len(Vv) > 1 or rank[si] > 0 or len(S) + nvec + 1 > 3: return False
                    if rank[si] == 0 and any('m0' in x[0] for x in S): return False
                    M.extend(grp); rank[si] = 1
                elif c == 't':
                    if M or Vv or Tt or S: return False
                    Tt.extend(grp); rank[si] = 2
                else:
                    if Tt or nvec >= 2 or len(S) + nvec + 1 > 3: return False
                    if Vv and not v2: return False
                    Vv.extend(grp); rank[si] = 2
                if st: nxt[si] = max(max(nxt[si], gi - 0.5 if st % 1 else gi) + st, gi + 1)
            pos[si] += 1
            return True
        order = list(range(len(streams)))
        longest = sorted(order, key=lambda i: (0 if not streams[i].get('rr') else 1, -(len(streams[i]['items']) - pos[i]) if streams[i].get('rr') else i))
        for si in order: try_place(si, 'm')
        if not M:
            for si in longest:
                if try_place(si, 't'): break
        progress = True
        while progress:
            progress = False
            for si in order:
                if try_place(si, 'sm'): progress = True
        progress = True
        while progress:
            progress = False
            for si in longest:
                if try_place(si, 'v'): progress = True
        out += S + M + Vv + Tt
    left = []
    for si, s in enumerate(streams):
        if s.get('keep'):
            del s['items'][:pos[si]]
            continue
        for it in s['items'][pos[si]:]:
            left += it if isinstance(it, list) else [it]
    return out + left, len(left) + forced

def stamp_begin(k):
    k('s_memtime s[90:91]')
    k('s_memrealtime s[92:93]')

def stamp_at(k, n):
    k(f's_memtime s[{80 + 2 * n}:{81 + 2 * n}]')
    k('s_waitcnt lgkmcnt(0)')

def stamp_end(k, srd_s, t0, t1, base=100 * MB):
    k('s_waitcnt vmcnt(0)')
    k('s_memtime s[88:89]')
    k('s_memrealtime s[94:95]')
    k('s_waitcnt lgkmcnt(0)')
    k(f'v_lshrrev_b32 {t1}, 6, v0')
    k(f'v_lshlrev_b32 {t1}, 5, {t1}')
    k(f's_lshl_b32 s96, s2, 8')
    k(f's_add_u32 s96, s96, {hex(base)}')
    k(f'v_add_u32 {t1}, s96, {t1}')
    for i, sr in enumerate([80, 82, 84, 86, 88]):
        k(f's_sub_u32 s{sr}, s{sr}, s90')
        k(f'v_mov_b32 {t0}, s{sr}')
        k(f'buffer_store_dword {t0}, {t1}, s[{srd_s}:{srd_s + 3}], 0 offen offset:{i * 4}')
    for i, sr in enumerate([92, 94]):
        k(f'v_mov_b32 {t0}, s{sr}')
        k(f'buffer_store_dword {t0}, {t1}, s[{srd_s}:{srd_s + 3}], 0 offen offset:{20 + i * 4}')

HDR = '.amdgcn_target "amdgcn-amd-amdhsa--gfx950"\n'
def write_file(fn, launches, kernels, head=''):
    s = head
    for nm, g, b, lds in launches:
        s += f'; @launch kernel={nm} grid=({g},1,1) block=({b},1,1) lds={lds}\n'
    s += HDR
    bodies = []; descs = []
    for k in kernels:
        b, d = kernel_text(k)
        bodies.append(b); descs.append(d)
    s += ''.join(bodies) + ''.join(descs)
    open(fn, 'w').write(s)
    return s
```

```python
from common import *
from small import f2u, MF, LOG2E, GK0, GK1, gelu, xlane_sum

GL = 131072
RL = GL + 2048
K1_LDS = RL + 16384

def gen_k1(name='proj_kernel', stamp=False, opt={}):
    k = Kernel(name)
    V = Alloc('v', 1, 256)
    WB = 65536
    k('s_cmp_ge_u32 s2, 256')
    k(f's_cbranch_scc1 {name}_end')
    k(f's_load_dwordx8 s[4:11], s[0:1], 0')
    k(f's_load_dwordx4 s[12:15], s[0:1], 32')
    k(f's_load_dwordx8 s[64:71], s[0:1], 56')
    k(f's_load_dwordx2 s[72:73], s[0:1], {ARG["gw"]}')
    k(f's_load_dwordx2 s[74:75], s[0:1], {ARG["ws"]}')
    if stamp: stamp_begin(k)
    srt, shead, swh, sw, srb = 's16', 's17', 's18', 's19', 's44'
    k('s_and_b32 s32, s2, 7')
    k('s_lshr_b32 s33, s2, 3')
    k(f's_and_b32 {srt}, s33, 7')
    k(f's_and_b32 {srb}, s33, 15')
    k(f's_lshr_b32 {shead}, s33, 4')
    k('s_lshl_b32 s32, s32, 1')
    k(f's_add_u32 {shead}, {shead}, s32')
    k(f's_bfe_u32 {swh}, s33, 0x10003')
    lane = V(); t0 = V(); t1 = V(); t2 = V(); t3 = V()
    k(f'v_and_b32 {lane}, 63, v0')
    k(f'v_lshrrev_b32 {t0}, 6, v0')
    k(f'v_readfirstlane_b32 {sw}, {t0}')
    dA = [V() for _ in range(4)]; dW = [V() for _ in range(4)]
    k(f'v_lshrrev_b32 {t0}, 2, {lane}')
    k(f'v_lshlrev_b32 {t0}, 11, {t0}')
    k(f's_lshl_b32 s32, {srt}, 19')
    k(f's_lshl_b32 s33, {sw}, 17')
    k(f's_add_u32 s32, s32, s33')
    k(f'v_add_u32 {t0}, s32, {t0}')
    k(f'v_lshrrev_b32 {t1}, 4, {lane}')
    k(f'v_sub_u32 {t1}, 0, {t1}')
    k(f'v_xor_b32 {t1}, {t1}, {lane}')
    k(f'v_and_b32 {t3}, 3, {t1}')
    k(f'v_lshl_add_u32 {dA[0]}, {t3}, 4, {t0}')
    for i in range(1, 4): k(f'v_add_u32 {dA[i]}, {hex(i * 16 * 2048 - i * 1024)}, {dA[0]}')
    k(f'v_lshrrev_b32 {t0}, 5, {lane}')
    k(f'v_bfe_u32 {t1}, {lane}, 1, 4')
    k(f'v_xor_b32 {t1}, {t1}, {t0}')
    k(f's_and_b32 s32, {sw}, 1')
    k(f's_lshl_b32 s32, s32, 2')
    k(f'v_xor_b32 {t1}, s32, {t1}')
    k(f'v_lshlrev_b32 {t0}, 13, {t0}')
    k(f's_lshl_b32 s32, {shead}, 9')
    k(f's_lshl_b32 s33, {sw}, 16')
    k(f's_add_u32 s32, s32, s33')
    k(f'v_add_u32 {t0}, s32, {t0}')
    k(f'v_and_b32 {t2}, 1, {lane}')
    k(f'v_lshl_add_u32 {t0}, {t2}, 4, {t0}')
    k(f'v_lshl_add_u32 {dW[0]}, {t1}, 5, {t0}')
    k(f'v_xor_b32 {t1}, 2, {t1}')
    k(f'v_lshl_add_u32 {dW[1]}, {t1}, 5, {t0}')
    k(f'v_add_u32 {dW[1]}, {hex(2 * 8192 - 1024)}, {dW[1]}')
    k(f'v_add_u32 {dW[2]}, {hex(4 * 8192 - 2048)}, {dW[0]}')
    k(f'v_add_u32 {dW[3]}, {hex(4 * 8192 - 2048)}, {dW[1]}')
    k(f's_lshl_b32 s34, {sw}, 12')
    k('s_mov_b32 s36, 0')
    k('s_mov_b32 s37, 0')
    k('s_waitcnt lgkmcnt(0)')
    srd(k, 20, 6, 2048 * 1024 * 2)
    k(f's_cmp_eq_u32 {swh}, 0')
    k('s_cselect_b32 s24, s10, s12')
    k('s_cselect_b32 s25, s11, s13')
    k('s_and_b32 s25, s25, 0xffff')
    k(f's_mov_b32 s26, {hex(1024 * 4096 * 2)}')
    k('s_mov_b32 s27, 0x20000')
    def dma(slot):
        tg = f'dma{slot}'
        L = [[(f's_add_u32 m0, s34, {hex(slot * 16384)}', None)]]
        L += [[(f'buffer_load_dwordx4 {dA[i]}, s[20:23], s36 offen offset:{i * 1024} lds', tg)] for i in range(4)]
        L += [[(f's_add_u32 m0, s34, {hex(WB + slot * 16384)}', None), ('s_add_u32 s36, s36, 64', None)]]
        L += [[(f'buffer_load_dwordx4 {dW[i]}, s[24:27], s37 offen offset:{i * 1024} lds', tg)] for i in range(4)]
        L += [[(f's_add_u32 s37, s37, {hex(32 * 8192)}', None)]]
        return L
    def emit(lst):
        for it in lst:
            for x, tg in (it if isinstance(it, list) else [it]): k(x, tag=tg)
    if opt.get('pflate', 1):
        for st in range(2): emit(dma(st))
    cs1 = [V(4), V(4)]; rs = [V(4), V(4)]
    pf = rs[0][0]; pd = rs[0][1]
    PFT = f'buffer_load_dword {pd}, {pf}, s[76:79], s39 offen'
    PFI = [[(PFT, None)], [('s_add_u32 s39, s39, s3', None)]]
    warm = opt.get('warm', 1)
    l2_, l3_, lgo, lsk = k.newlabel('p2'), k.newlabel('p3'), k.newlabel('pg'), k.newlabel('ps')
    k('s_mov_b32 s79, 0x20000')
    k('s_mov_b32 s39, 0')
    k(f's_cmp_eq_u32 {sw}, 2'); k(f's_cbranch_scc1 {l2_}')
    k(f's_cmp_eq_u32 {sw}, 3'); k(f's_cbranch_scc1 {l3_}')
    k('s_mov_b32 s76, s20'); k('s_mov_b32 s77, s21'); k('s_mov_b32 s78, s22')
    k('s_mov_b32 s3, 256')
    k(f's_lshr_b32 s32, s2, 6')
    k(f's_lshl_b32 s32, s32, 1'); k(f's_add_u32 s32, s32, {sw}')
    k(f's_lshl_b32 s32, s32, 16')
    k(f's_lshl_b32 s33, {srt}, 19'); k('s_add_u32 s32, s32, s33')
    k(f'v_lshrrev_b32 {t0}, 1, {lane}')
    k(f'v_lshlrev_b32 {t0}, 11, {t0}')
    k(f'v_and_b32 {t1}, 1, {lane}')
    k(f'v_lshl_add_u32 {t0}, {t1}, 7, {t0}')
    k(f'v_add_u32 {pf}, s32, {t0}')
    k(f's_branch {lgo}')
    k.label(l2_)
    k('s_mov_b32 s76, s24'); k('s_mov_b32 s77, s25'); k('s_mov_b32 s78, s26')
    k(f's_mov_b32 s3, {128 * 8192}')
    k(f's_lshl_b32 s32, {srt}, 17')
    k(f's_lshl_b32 s33, {shead}, 9'); k('s_add_u32 s32, s32, s33')
    k(f'v_lshrrev_b32 {t0}, 2, {lane}')
    k(f'v_lshlrev_b32 {t0}, 13, {t0}')
    k(f'v_and_b32 {t1}, 3, {lane}')
    k(f'v_lshl_add_u32 {t0}, {t1}, 7, {t0}')
    k(f'v_add_u32 {pf}, s32, {t0}')
    k.label(lgo)
    if warm:
        emit(PFI); emit(PFI)
    k(f's_branch {lsk}')
    k.label(l3_)
    k('s_mov_b32 s3, 8192')
    k('s_mov_b32 s76, s4'); k('s_mov_b32 s77, s5'); k(f's_mov_b32 s78, {2048 * 896}'); k('s_mov_b32 s32, s2')
    lo = 32
    for base, nbytes in ((8, 448 * 8192), (64, 448 * 896), (66, 448 * 896)):
        k(f's_cmp_ge_u32 s2, {lo}')
        k(f's_cselect_b32 s76, s{base}, s76'); k(f's_cselect_b32 s77, s{base + 1}, s77'); k(f's_cselect_b32 s78, {nbytes}, s78')
        k(f's_cselect_b32 s33, {lo}, 0') if lo == 32 else k(f's_cselect_b32 s33, {lo}, s33')
        lo += nbytes // (448 * 128)
    k('s_and_b32 s77, s77, 0xffff')
    k('s_sub_u32 s32, s2, s33')
    k(f's_mul_i32 s32, s32, {448 * 128}')
    k(f'v_lshlrev_b32 {t0}, 7, {lane}')
    k(f'v_add_u32 {pf}, s32, {t0}')
    k.label(lsk)
    if not opt.get('pflate', 1):
        for st in range(2): emit(dma(st))
    rA = V(); rW = [V() for _ in range(8)]
    g = V(); r = V()
    k(f'v_lshrrev_b32 {g}, 4, {lane}')
    k(f'v_bfe_u32 {r}, {lane}, 2, 2')
    k(f'v_sub_u32 {t0}, 0, {r}')
    k(f'v_xor_b32 {t0}, {t0}, {g}')
    k(f'v_and_b32 {t0}, 3, {t0}')
    k(f'v_and_b32 {t1}, 15, {lane}')
    k(f'v_lshlrev_b32 {t1}, 6, {t1}')
    k(f'v_lshl_add_u32 {t1}, {t0}, 4, {t1}')
    k(f's_and_b32 s45, {sw}, 1')
    k(f's_lshr_b32 s46, {sw}, 1')
    k(f's_lshl_b32 s32, s45, 13')
    k(f'v_add_u32 {rA}, s32, {t1}')
    rA2 = [V(), V()]
    k(f's_lshl_b32 s32, s45, 12')
    k(f's_lshl_b32 s33, s46, 11')
    k(f's_add_u32 s32, s32, s33')
    k(f'v_add_u32 {rA2[0]}, s32, {t1}')
    k(f'v_xor_b32 {rA2[1]}, 0x800, {rA2[0]}')
    k(f'v_lshl_add_u32 {t0}, {g}, 3, {r}')
    k(f'v_and_b32 {t1}, 3, {lane}')
    k(f'v_lshlrev_b32 {t1}, 3, {t1}')
    r1 = [V(), V()]; r3 = V(); rG = V()
    k(f'v_lshl_add_u32 {r1[0]}, {t0}, 6, {t1}')
    k(f'v_bfe_u32 {t2}, {lane}, 4, 1')
    k(f'v_lshl_add_u32 {r1[0]}, {t2}, 5, {r1[0]}')
    k(f'v_xor_b32 {r1[1]}, 32, {r1[0]}')
    k(f'v_lshl_add_u32 {r3}, {t0}, 5, {t1}')
    k(f'v_lshlrev_b32 {t0}, 9, {t0}')
    k(f'v_add_u32 {t0}, {t0}, {t1}')
    k(f's_lshl_b32 s32, s46, 8')
    k(f's_add_u32 s32, s32, {hex(WB)}')
    k(f'v_add_u32 {t0}, s32, {t0}')
    k(f'v_bfe_u32 {t1}, {lane}, 2, 3')
    for nt in range(8):
        k(f'v_xor_b32 {t2}, {nt}, {t1}')
        k(f'v_lshl_add_u32 {rW[nt]}, {t2}, 5, {t0}')
    k(f'v_and_b32 {t0}, 1, {lane}')
    k(f'v_xor_b32 {t0}, 1, {t0}')
    k(f'v_lshlrev_b32 {t0}, 10, {t0}')
    k(f'v_lshl_add_u32 {rG}, {g}, 4, {t0}')
    k(f'v_add_u32 {rG}, {hex(GL)}, {rG}')
    ones = V(4)
    for j in range(4): k(f'v_mov_b32 {ones[j]}, 0x3f803f80')
    so = V()
    k(f'v_lshlrev_b32 {so}, 4, {lane}')
    k(f'v_add_u32 {t0}, {hex(GL + 1024)}, {so}')
    k(f'ds_write_b128 {t0}, {ones}')
    srd(k, 28, 72, 896)
    k(f's_mov_b32 m0, {hex(GL)}')
    k(f'buffer_load_dwordx4 {so}, s[28:31], 0 offen lds')
    dA2 = [V(), V()]; dX = V()
    k(f'v_lshrrev_b32 {t0}, 2, {lane}')
    k(f's_lshl_b32 s32, {srb}, 7')
    k(f's_lshl_b32 s33, {sw}, 5')
    k(f's_add_u32 s32, s32, s33')
    k(f'v_add_u32 {t0}, s32, {t0}')
    k(f'v_mul_u32_u24 {t0}, 896, {t0}')
    k(f'v_lshl_add_u32 {dA2[0]}, {t3}, 4, {t0}')
    k(f'v_add_u32 {dA2[1]}, {hex(16 * 896 - 1024)}, {dA2[0]}')
    lw1, lxd = k.newlabel('xw'), k.newlabel('xd')
    k(f's_mov_b32 s55, 0x20000')
    k(f's_cmp_lt_u32 {sw}, 2')
    k(f's_cbranch_scc1 {lw1}')
    k(f's_mov_b32 s52, s68')
    k(f's_and_b32 s53, s69, 0xffff')
    k(f's_cmp_eq_u32 {sw}, 2')
    k(f's_cselect_b32 s54, {hex(448 * 3584)}, 0')
    k(f's_cmp_lt_u32 s2, 112')
    k(f's_cselect_b32 s54, s54, 0')
    k(f's_mov_b32 s47, {32 * 3584}')
    k(f'v_lshrrev_b32 {t0}, 1, {lane}')
    k(f'v_mul_u32_u24 {t0}, 3584, {t0}')
    k(f'v_and_b32 {t1}, 1, {lane}')
    k(f'v_lshl_add_u32 {t0}, {t1}, 4, {t0}')
    k(f's_lshl_b32 s32, s2, 5')
    k(f'v_add_u32 {dX}, s32, {t0}')
    k(f's_branch {lxd}')
    k.label(lw1)
    k(f's_mov_b32 s52, s64')
    k(f's_and_b32 s53, s65, 0xffff')
    k(f's_cmp_lt_u32 {shead}, 14')
    k(f's_cselect_b32 s54, {hex(448 * 896)}, 0')
    k(f's_mov_b32 s47, {32 * 896}')
    k(f'v_lshrrev_b32 {t0}, 2, {lane}')
    k(f's_lshl_b32 s32, {sw}, 4')
    k(f'v_add_u32 {t0}, s32, {t0}')
    k(f'v_mul_u32_u24 {t0}, 896, {t0}')
    k(f'v_lshrrev_b32 {t1}, 4, {lane}')
    k(f'v_and_b32 {t1}, 2, {t1}')
    k(f'v_xor_b32 {t1}, {t1}, {lane}')
    k(f'v_and_b32 {t1}, 3, {t1}')
    k(f'v_lshl_add_u32 {t0}, {t1}, 4, {t0}')
    k(f's_lshl_b32 s32, {shead}, 6')
    k(f'v_add_u32 {dX}, s32, {t0}')
    k.label(lxd)
    srd(k, 56, 4, 2048 * 896)
    srd(k, 60, 8, 448 * 8192)
    srd(k, 28, 74, 256 * MB)
    k(f'v_mov_b32 {t0}, 0')
    k(f's_lshl_b32 s32, s2, 7'); k(f's_add_u32 s32, s32, {hex(WS_FL)}')
    k(f'buffer_store_dword {t0}, off, s[28:31], s32')
    vR = [rs[0][2], rs[0][3]]; rR = [rs[1][j] for j in range(4)]
    vRc = V()
    k(f'v_bfe_u32 {t1}, {lane}, 1, 2')
    k(f'v_lshrrev_b32 {t2}, 4, {lane}')
    k(f'v_xor_b32 {t1}, {t1}, {t2}')
    k(f'v_lshlrev_b32 {t1}, 5, {t1}')
    k(f'v_and_b32 {t2}, 1, {lane}')
    k(f'v_lshl_add_u32 {vRc}, {t2}, 4, {t1}')
    k(f's_lshl_b32 s32, {sw}, 12')
    k(f's_add_u32 s97, s32, {hex(RL)}')
    k(f'v_lshrrev_b32 {t0}, 2, {lane}')
    k(f'v_lshlrev_b32 {t0}, 7, {t0}')
    k(f'v_and_b32 {t1}, 3, {lane}')
    k(f'v_lshl_add_u32 {t0}, {t1}, 3, {t0}')
    k(f'v_add_u32 {t0}, s97, {t0}')
    k(f'v_bfe_u32 {t1}, {lane}, 3, 2')
    for nt in range(4):
        k(f'v_xor_b32 {t2}, {nt}, {t1}')
        k(f'v_lshl_add_u32 {rR[nt]}, {t2}, 5, {t0}')
    JS = [dict(srd=4, step='s8', off='s9', dst=10), dict(srd=64, step='s72', off='s73', dst=98)]
    def job_setup(i):
        J = JS[i]; R = J['srd']; st_ = J['step']; of_ = J['off']; D = J['dst']
        lo_, l4_, ld_ = k.newlabel('jo'), k.newlabel('j4'), k.newlabel('jd')
        k(f's_lshl_b32 s32, s2, 2'); k(f's_add_u32 s32, s32, {sw}')
        k(f's_lshl_b32 s32, s32, 1'); k(f's_add_u32 s32, s32, {i}')
        k(f's_mov_b32 s{R + 3}, 0x20000')
        k('s_cmp_ge_u32 s32, 392'); k(f's_cbranch_scc1 {lo_}')
        k(f's_mov_b32 s{R}, s68'); k(f's_and_b32 s{R + 1}, s69, 0xffff'); k(f's_mov_b32 s{R + 2}, {448 * 3584}')
        k('s_mul_i32 s33, s32, 2341'); k('s_lshr_b32 s33, s33, 16')
        k('s_mul_i32 s40, s33, 28'); k('s_sub_u32 s40, s32, s40')
        k(f's_mul_i32 {of_}, s33, {32 * 3584}'); k('s_lshl_b32 s41, s40, 7'); k(f's_add_u32 {of_}, {of_}, s41')
        k(f's_mov_b32 {st_}, 3584')
        k('s_mul_i32 s33, s33, 7')
        k('s_lshl_b32 s40, s40, 2')
        for j in range(4):
            k(f's_add_u32 s41, s40, {j}')
            k('s_mul_i32 s42, s41, 9363'); k('s_lshr_b32 s42, s42, 16')
            k('s_mul_i32 s43, s42, 1017')
            k('s_add_u32 s41, s41, s33')
            k(f's_add_u32 s{D + j}, s41, s43')
        k(f's_branch {ld_}')
        k.label(lo_)
        k(f's_mov_b32 {st_}, 896')
        k('s_cmp_ge_u32 s32, 1288'); k(f's_cbranch_scc1 {l4_}')
        k(f's_mov_b32 s{R}, s14'); k(f's_and_b32 s{R + 1}, s15, 0xffff'); k(f's_mov_b32 s{R + 2}, {4096 * 896}')
        k('s_sub_u32 s32, s32, 392')
        k('s_mul_i32 s33, s32, 9363'); k('s_lshr_b32 s33, s33, 16')
        k('s_mul_i32 s40, s33, 7'); k('s_sub_u32 s40, s32, s40')
        k(f's_mul_i32 {of_}, s33, {32 * 896}'); k('s_lshl_b32 s41, s40, 7'); k(f's_add_u32 {of_}, {of_}, s41')
        k('s_lshr_b32 s42, s33, 3'); k('s_lshl_b32 s42, s42, 10')
        k('s_and_b32 s33, s33, 7'); k('s_mul_i32 s33, s33, 28')
        k('s_lshl_b32 s40, s40, 2'); k('s_add_u32 s33, s33, s40'); k('s_add_u32 s33, s33, s42')
        for j in range(4): k(f's_add_u32 s{D + j}, s33, {NC_F + j}')
        k(f's_branch {ld_}')
        k.label(l4_)
        k(f's_mov_b32 s{R}, s70'); k(f's_and_b32 s{R + 1}, s71, 0xffff')
        k('s_cmp_lt_u32 s32, 1736'); k(f's_cselect_b32 s{R + 2}, {1792 * 896}, 0')
        k('s_sub_u32 s32, s32, 1288')
        k('s_mul_i32 s33, s32, 9363'); k('s_lshr_b32 s33, s33, 16')
        k('s_mul_i32 s40, s33, 7'); k('s_sub_u32 s40, s32, s40')
        k('s_lshr_b32 s42, s33, 2'); k('s_and_b32 s33, s33, 3')
        k(f's_mul_i32 {of_}, s42, {112 * 896}'); k(f's_mul_i32 s41, s33, {32 * 896}'); k(f's_add_u32 {of_}, {of_}, s41')
        k('s_lshl_b32 s41, s40, 7'); k(f's_add_u32 {of_}, {of_}, s41')
        k('s_lshl_b32 s42, s42, 10')
        k('s_lshl_b32 s40, s40, 4'); k('s_add_u32 s33, s33, s40'); k('s_add_u32 s33, s33, s42')
        for j in range(4): k(f's_add_u32 s{D + j}, s33, {NC_F + NO_F + 4 * j}')
        k.label(ld_)
        for j in range(4):
            d = f's{D + j}'
            k(f's_lshr_b32 s40, {d}, 10')
            k(f's_cmp_ge_u32 s40, 16'); k(f's_cselect_b32 s40, 200, s40')
            k(f's_lshl_b32 s40, s40, 20')
            k(f's_bfe_u32 s41, {d}, 0x50005'); k('s_lshl_b32 s41, s41, 14'); k('s_add_u32 s40, s40, s41')
            k(f's_mov_b32 s41, {hex(WJ + 16384)}')
            k(f's_bitcmp1_b32 {d}, 4'); k(f's_cmov_b32 s41, {hex(WJ + WS_V)}')
            k('s_add_u32 s40, s40, s41')
            k(f's_and_b32 s41, {d}, 15'); k('s_lshl_b32 s41, s41, 10')
            k(f's_add_u32 {d}, s40, s41')
        k(f'v_lshrrev_b32 {vR[i]}, 3, {lane}')
        k(f'v_mul_lo_u32 {vR[i]}, {vR[i]}, {st_}')
        k(f'v_add_u32 {vR[i]}, {vR[i]}, {vRc}')
        k(f's_lshl_b32 {st_}, {st_}, 3')
        k(f's_sub_u32 {st_}, {st_}, 1024')
    job_setup(0); job_setup(1)
    V.release(vRc)
    def job_dma(i):
        J = JS[i]; R = J['srd']
        L = [[('s_mov_b32 m0, s97', None)]]
        for n in range(4):
            L.append([(f'buffer_load_dwordx4 {vR[i]}, s[{R}:{R + 3}], {J["off"]} offen offset:{n * 1024} lds', 'job')])
            L.append([(f's_add_u32 {J["off"]}, {J["off"]}, {J["step"]}', None)])
        return L
    def job_out(i, F):
        L = []
        for nt in range(4):
            L += [(f'ds_read_b64_tr_b16 {F[nt].sub(2 * j, 2)}, {rR[nt]} offset:{j * 2048}', None) for j in range(2)]
        S = [(f'buffer_store_dwordx4 {F[nt]}, {so}, s[28:31], s{JS[i]["dst"] + nt} offen', None) for nt in range(4)]
        return L, S
    k(f's_lshl_b32 s35, {sw}, 11')
    k(f's_lshl_b32 s48, {sw}, 10')
    k(f's_add_u32 s48, s48, 8192')
    k('s_mov_b32 s49, 0')
    def dmaq(slot, first=False):
        tg = f'dma{slot}'
        L = []
        if first: L += [[('s_mov_b32 s36, 0', None), ('s_mov_b32 s37, 0', None)]]
        L += [[(f's_add_u32 m0, s35, {hex(slot * 16384)}', None)]]
        L += [[(f'buffer_load_dwordx4 {dA2[i]}, s[56:59], s36 offen offset:{i * 1024} lds', tg)] for i in range(2)]
        L += [[(f's_add_u32 m0, s48, {hex(slot * 16384)}', None), ('s_add_u32 s36, s36, 64', None)]]
        L += [[(f'buffer_load_dwordx4 {dX}, s[52:55], s49 offen lds', tg)]]
        L += [[(f's_add_u32 m0, s34, {hex(WB + slot * 16384)}', None), ('s_add_u32 s49, s49, s47', None)]]
        L += [[(f'buffer_load_dwordx4 {dW[i]}, s[60:63], s37 offen offset:{i * 1024} lds', tg)] for i in range(4)]
        L += [[(f's_add_u32 s37, s37, {hex(32 * 8192)}', None)]]
        return L
    V.release(g, r)
    FA = [[V(4) for _ in range(8)] for _ in range(2)]
    FW = [[V(4) for _ in range(8)] for _ in range(2)]
    for i in range(256): k(f'v_accvgpr_write_b32 a{i}, 0')
    def wreads(slot, fs, i):
        return [(f'ds_read_b64_tr_b16 {FW[fs][i].sub(2 * j, 2)}, {rW[i]} offset:{slot * 16384 + (4 * j) * 512}', None) for j in range(2)]
    def reads(slot, fs):
        L = []
        for i in range(8):
            L.append((f'ds_read_b128 {FA[fs][i]}, {rA} offset:{slot * 16384 + i * 1024}', None))
            L += wreads(slot, fs, i)
        return L
    def readsq(slot, fs, s):
        b = slot * 16384
        L = []
        for i in range(2): L.append((f'ds_read_b128 {FA[fs][i]}, {rA2[0]} offset:{b + i * 1024}', None))
        for nt in range(2):
            L += [(f'ds_read_b64_tr_b16 {FA[fs][4 + nt].sub(2 * j, 2)}, {r1[nt]} offset:{b + 8192 + j * 256}', None) for j in range(2)]
        L.append((f'ds_read_b128 {FA[fs][7]}, {rG} offset:{s * 64}', None))
        L += [(f'ds_read_b64_tr_b16 {FA[fs][6].sub(2 * j, 2)}, {r3} offset:{b + 10240 + j * 128}', None) for j in range(2)]
        for i in range(2): L.append((f'ds_read_b128 {FA[fs][2 + i]}, {rA2[1]} offset:{b + i * 1024}', None))
        for i in range(8): L += wreads(slot, fs, i)
        return L
    def acc(tt, nt): return Reg('a', (tt * 8 + nt) * 4, 4)
    def mfmas(fs, isV):
        L = []
        for tt in range(8):
            for nt in (range(8) if tt % 2 == 0 else range(7, -1, -1)):
                a, b = (FA[fs][tt], FW[fs][nt]) if isV else (FW[fs][nt], FA[fs][tt])
                L.append(f'{MF} {acc(tt, nt)}, {a}, {b}, {acc(tt, nt)}')
        return L
    k('s_waitcnt lgkmcnt(0)')
    k.wait('dma0')
    k('s_barrier')
    if stamp: stamp_at(k, 0)
    emit(reads(0, 0))
    emit(dma(2))
    QV = [V(4) for _ in range(8)]
    aacc = [[V(4) for _ in range(2)] for _ in range(2)]
    cs3 = Reg('v', dA[0].i, 4) if False else V(4); sq = [Reg('v', dA[0].i, 1), Reg('v', dA[1].i, 1)]
    T = V(8, 4); PK = [V(4), V(4)]
    k(f's_cmp_eq_u32 {swh}, 0')
    k(f's_cbranch_scc0 {name}_V')
    rs_ = opt.get('rstride', 2); ds_ = opt.get('dstride', 7)
    for isV in (0, 1):
        if isV: k.label(f'{name}_V')
        k(f's_lshl_b32 s40, {shead}, 20')
        if isV: k(f's_add_u32 s40, s40, {hex(WS_V)}')
        k(f's_lshl_b32 s41, {srt}, 17'); k('s_add_u32 s40, s40, s41')
        k('s_lshl_b32 s41, s45, 16'); k('s_add_u32 s40, s40, s41')
        k(f's_lshl_b32 s41, s46, {13 if isV else 12}'); k('s_add_u32 s40, s40, s41')
        def jobst(i):
            rd, sto = job_out(i, QV)
            return [dict(items=rd, start=3, stride=2), dict(items=sto, start=52, stride=3)]
        def kvstep(s, d, more=[]):
            k('s_waitcnt lgkmcnt(0)')
            k.wait(f'dma{(s + 1) % 4}')
            if more: k.wait('job')
            k('s_barrier')
            st = [d, dict(items=reads((s + 1) % 4, (s + 1) % 2), stride=rs_)] + more
            if s == 0 and warm: st.append(dict(items=list(PFI), start=opt.get('pfgap', 51)))
            lst, left = pack(mfmas(s % 2, isV), st)
            assert left == 0
            emit(lst)
        kvstep(0, dict(items=dma(3) + dma(0), start=1, stride=3.5))
        kvstep(1, dict(items=job_dma(0) + dma(1), start=1, stride=5))
        kvstep(2, dict(items=dma(2), start=1, stride=ds_))
        kvstep(3, dict(items=dma(3), start=1, stride=ds_), more=jobst(0))
        k('s_mov_b32 s38, 1')
        lp = f'{name}_loop{isV}'
        k.raw('.p2align 6')
        k.label(lp)
        for s in range(4): kvstep(s, dict(items=dma(s), start=1, stride=ds_))
        k('s_add_u32 s38, s38, 1')
        k('s_cmp_lt_u32 s38, 7')
        k(f's_cbranch_scc1 {lp}')
        drain = []; freed = []
        n = 0
        for o in range(8):
            for u in range(4):
                if not isV:
                    A0 = acc(o, 2 * u); A1 = acc(o, 2 * u + 1); off = o * 8192 + u * 1024
                else:
                    nt = (o & 1) * 4 + u; uu = o >> 1
                    A0 = acc(2 * uu, nt); A1 = acc(2 * uu + 1, nt); off = uu * 16384 + nt * 1024
                P = PK[n % 2]; n += 1
                for j in range(4): drain.append((f'v_accvgpr_read_b32 {T[j]}, {A0[j]}', None))
                for j in range(4): drain.append((f'v_accvgpr_read_b32 {T[4 + j]}, {A1[j]}', None))
                for j in range(4): drain.append((f'v_cvt_pk_bf16_f32 {P[j]}, {T[2 * j]}, {T[2 * j + 1]}', None))
                if u == 0: drain.append((f's_add_u32 s41, s40, {hex(off & ~0xfff)}', None))
                if opt.get('nostore'): drain.append(('s_nop 0', None))
                else: drain.append((f'buffer_store_dwordx4 {P}, {so}, s[28:31], s41 offen offset:{off & 0xfff}' + opt.get('stmod', ''), None))
                freed += [A0, A1]
        PER4 = 4 * 13 + 1
        Qacc = [freed[0:8], freed[8:16], freed[16:24], QV]
        XX = freed[24:26]
        dstream = dict(items=drain, keep=True)
        for s in range(4):
            k('s_waitcnt lgkmcnt(0)')
            k.wait(f'dma{(s + 1) % 4}')
            if s == 2: k.wait('job')
            k('s_barrier')
            if s == 0: st = [dict(items=job_dma(1) + dmaq(s, first=True), start=1, stride=5)]
            else: st = [dict(items=dmaq(s), start=1, stride=ds_ + 1)]
            if s < 3: st.append(dict(items=reads(s + 1, (s + 1) % 2), stride=rs_))
            if s == 2: st += jobst(1)
            if s < 3: pass
            else:
                st.append(dict(items=readsq(0, 0, 0), stride=rs_))
                rdy = (lambda gi, p: gi >= ((p // PER4) + 1) * 8 + 2) if not isV else (lambda gi, p: gi >= ((p // PER4) // 2 + 1) * 16 + 2)
                dstream['gate'] = rdy
                st.insert(1, dstream)
            lst, _ = pack(mfmas(s % 2, isV), st)
            emit(lst)
        del dstream['gate']
        if stamp: stamp_at(k, 1)
        done0 = 32 * 13 + 8 - len(drain)
        for s in range(14):
            fs = s % 2
            C = lambda r_: '0' if s == 0 else str(r_)
            M = []
            for rt in range(2):
                for nt in range(2): M.append(f'{MF} {aacc[rt][nt]}, {FA[fs][4 + nt]}, {FA[fs][rt]}, {C(aacc[rt][nt])}')
            for nt in range(2): M.append(f'{MF} {cs1[nt]}, {FA[fs][4 + nt]}, {ones}, {C(cs1[nt])}')
            for rt in range(2): M.append(f'{MF} {rs[rt]}, {FA[fs][7]}, {FA[fs][rt]}, {C(rs[rt])}')
            M.append(f'{MF} {cs3}, {FA[fs][6]}, {ones}, {C(cs3)}')
            for i, tt in enumerate((3, 0, 1, 2)):
                for nt in (range(8) if i % 2 == 0 else range(7, -1, -1)):
                    M.append(f'{MF} {Qacc[tt][nt]}, {FW[fs][nt]}, {FA[fs][tt]}, {C(Qacc[tt][nt])}')
            for rt in range(2): M.append(f'{MF} {XX[rt]}, {FA[fs][rt]}, {FA[fs][rt]}, {C(XX[rt])}')
            k('s_waitcnt lgkmcnt(0)')
            st = []
            if s + 1 < 14:
                k.wait(f'dma{(s + 1) % 4}')
                k('s_barrier')
            if s + 4 < 14 and not opt.get('nodmaq'): st.append(dict(items=dmaq(s % 4), start=1, stride=opt.get('dq', 5)))
            if s + 1 < 14: st.append(dict(items=readsq((s + 1) % 4, 1 - fs, s + 1), stride=opt.get('rq', 1.25)))
            if s == 0:
                dstream['by'] = {17: PER4 - done0, 25: 2 * PER4 - done0, 33: 3 * PER4 - done0, 41: 3 * PER4 + 8 - done0}
            else:
                dstream.pop('by', None)
                bud = opt.get('dbud', 21)
                dstream['gate'] = lambda gi, p: p < bud
            st.insert(1 if s + 4 < 14 else 0, dstream)
            lst, left = pack(M, st)
            if opt.get('verbose'): print('Q step', s, 'overflow', left, 'drain left', len(drain))
            emit(lst)
        emit(drain)
        if stamp: stamp_at(k, 2)
        k(f's_lshl_b32 s40, {shead}, 20')
        k(f's_add_u32 s40, s40, {hex(WS_Q)}')
        k(f's_lshl_b32 s41, {srb}, 16'); k('s_add_u32 s40, s40, s41')
        k('s_lshl_b32 s41, s45, 15'); k('s_add_u32 s40, s40, s41')
        k('s_lshl_b32 s41, s46, 12'); k('s_add_u32 s40, s40, s41')
        k('s_lshl_b32 s41, s46, 14')
        k('s_add_u32 s42, s40, s41')
        k('s_xor_b32 s41, s41, 0x4000')
        k('s_add_u32 s43, s40, s41')
        SC = FW[0][0].sub(0, 2)
        k(f'v_mov_b32 {SC[0]}, {hex(f2u(LOG2E / 16))}'); k(f'v_mov_b32 {SC[1]}, {hex(f2u(LOG2E / 16))}')
        T2 = [FW[1][0], FW[1][2]]
        PQ = [FW[0][i] for i in range(1, 7)]
        n = 0
        for tt in (3, 0, 1, 2):
            k(f's_add_u32 s41, {"s42" if tt < 2 else "s43"}, {(tt & 1) * 8192}')
            for u in range(4):
                A0 = Qacc[tt][2 * u]; A1 = Qacc[tt][2 * u + 1]
                if tt != 3:
                    TT = Reg('v', T2[n % 2].i, 8)
                    for j in range(4): k(f'v_accvgpr_read_b32 {TT[j]}, {A0[j]}')
                    for j in range(4): k(f'v_accvgpr_read_b32 {TT[4 + j]}, {A1[j]}')
                    A0 = TT.sub(0, 4); A1 = TT.sub(4, 4)
                P = PQ[n % 6]; n += 1
                for X in (A0, A1):
                    for j in (0, 2): k(f'v_pk_mul_f32 {X.sub(j, 2)}, {X.sub(j, 2)}, {SC}')
                for j in range(4):
                    X = A0 if j < 2 else A1
                    k(f'v_cvt_pk_bf16_f32 {P[j]}, {X[(j % 2) * 2]}, {X[(j % 2) * 2 + 1]}')
                k(f'buffer_store_dwordx4 {P}, {so}, s[28:31], s41 offen offset:{u * 1024}')
        for rt in range(2):
            for j in range(4): k(f'v_accvgpr_read_b32 {T[rt * 4 + j]}, {XX[rt][j]}')
        k(f's_branch {name}_tail')
    k.label(f'{name}_tail')
    l3 = k.newlabel('n3')
    k(f'v_lshrrev_b32 {t0}, 4, {lane}')
    k(f's_cmp_ge_u32 s2, 112'); k(f's_cbranch_scc1 {l3}')
    k(f's_cmp_lg_u32 {sw}, 0'); k(f's_cbranch_scc1 {l3}')
    k(f'v_lshlrev_b32 {t1}, 4, {t0}')
    k(f's_lshl_b32 s32, s2, 6')
    k(f's_add_u32 s32, s32, {hex(WS_CS)}')
    k(f'buffer_store_dwordx4 {cs3}, {t1}, s[28:31], s32 offen')
    k.label(l3)
    k(f'v_and_b32 {t1}, 15, {lane}')
    k(f's_lshl_b32 s32, {srb}, 7')
    k(f's_lshl_b32 s33, s45, 6'); k('s_add_u32 s32, s32, s33')
    k(f's_lshl_b32 s33, s46, 5'); k('s_add_u32 s32, s32, s33')
    k(f'v_add_u32 {t1}, s32, {t1}')
    lh = k.newlabel('h')
    k(f's_cmp_lt_u32 {shead}, 14'); k(f's_cbranch_scc1 {lh}')
    k(f's_cmp_lg_u32 {shead}, 14'); k(f's_cbranch_scc1 {name}_fin')
    k(f'v_lshlrev_b32 {t1}, 2, {t1}')
    k(f's_mov_b32 s32, {hex(WS_G)}')
    for rt in range(2):
        gq = rs[rt][1]
        k(f'v_mul_f32 {gq}, {hex(f2u(-LOG2E))}, {gq}')
        k(f'v_exp_f32 {gq}, {gq}')
        k(f'v_add_f32 {gq}, 1.0, {gq}')
        k(f'v_rcp_f32 {gq}, {gq}')
        k(f'buffer_store_dword {gq}, {t1}, s[28:31], s32 offen offset:{rt * 64}')
    k(f's_branch {name}_fin')
    k.label(lh)
    k(f'v_mul_u32_u24 {t1}, 896, {t1}')
    k(f'v_lshl_add_u32 {t1}, {t0}, 3, {t1}')
    k(f'v_lshlrev_b32 {t0}, 2, {t0}')
    k(f'v_and_b32 {t2}, 15, {lane}')
    k(f'v_sub_u32 {t2}, {t2}, {t0}')
    for rt in range(2): k(f'v_mov_b32 {sq[rt]}, 0')
    for j in range(4):
        k(f'v_cmp_eq_u32 vcc, {j}, {t2}')
        for rt in range(2): k(f'v_cndmask_b32 {sq[rt]}, {sq[rt]}, {T[rt * 4 + j]}, vcc')
    xlane_sum(k, sq, [t0, t2])
    k(f's_mov_b32 s50, {hex(f2u(1.0 / 448))}')
    k(f's_mov_b32 s51, {hex(f2u(GK1))}')
    k(f'v_mov_b32 {t3}, {hex(f2u(GK0))}')
    k(f's_lshl_b32 s32, {shead}, 6')
    k(f's_add_u32 s32, s32, {hex(WS_H)}')
    for rt in range(2):
        mu = rs[rt][0]; rstd = rs[rt][2]
        k(f'v_mul_f32 {mu}, s50, {mu}')
        k(f'v_mul_f32 {t0}, {mu}, {mu}')
        k(f'v_fma_f32 {t0}, {sq[rt]}, s50, -{t0}')
        k(f'v_max_f32 {t0}, 0, {t0}')
        k(f'v_add_f32 {t0}, {hex(f2u(1e-5))}, {t0}')
        k(f'v_rsq_f32 {rstd}, {t0}')
    xs = [aacc[rt][nt][j] for rt in range(2) for nt in range(2) for j in range(4)]
    for i, x in enumerate(xs): k(f'v_fma_f32 {x}, -{rs[i // 8][0]}, {cs1[(i // 4) % 2][i % 4]}, {x}')
    for i, x in enumerate(xs): k(f'v_mul_f32 {x}, {x}, {rs[i // 8][2]}')
    TG = [FA[0][i // 4][i % 4] for i in range(16)]
    gelu(k, xs, TG, t3, 's51')
    for rt in range(2):
        if rt: k(f's_add_u32 s32, s32, {16 * 896}')
        for nt in range(2):
            p = T.sub(rt * 4 + nt * 2, 2)
            k(f'v_cvt_pk_bf16_f32 {p[0]}, {aacc[rt][nt][0]}, {aacc[rt][nt][1]}')
            k(f'v_cvt_pk_bf16_f32 {p[1]}, {aacc[rt][nt][2]}, {aacc[rt][nt][3]}')
            k(f'buffer_store_dwordx2 {p}, {t1}, s[28:31], s32 offen offset:{nt * 32}')
    k.label(f'{name}_fin')
    if stamp:
        stamp_at(k, 3)
        stamp_end(k, 28, t0, t1)
    k.label(f'{name}_end')
    k('s_endpgm')
    k.finalize()
    return k

if __name__ == '__main__':
    k = gen_k1(stamp=True, opt=dict(verbose=1))
    print(k.stats(), k.maxregs())
```

```python
from common import *
from small import f2u, MF, LOG2E, GK0, GK1, xlane_sum, WSlab
import sys

BIAS = 40.0
PART_STRIDE = 72 * 1024
K2_LDS = 131072 + 28672

def gen_k2(name='attn_kernel', stamp=False, opt={}):
    UA = opt.get('UA', 34)
    k = Kernel(name)
    V = Alloc('v', 1, 128)
    O = lambda dt, qt: Reg('v', 128 + (dt * 2 + qt) * 4, 4)
    Qf = lambda qt, ds: Reg('a', (qt * 8 + ds) * 4, 4)
    Kf = lambda kt, ds: Reg('a', 64 + (kt * 8 + ds) * 4, 4)
    Vf = lambda dt: Reg('a', 128 + dt * 4, 4)
    ONES = Reg('a', 252, 4)
    lane = V(); l16 = V(); vdma = V()
    big = V(64, 4)
    S = [[[big.sub(((b * 2 + kt) * 2 + qt) * 4, 4) for qt in range(2)] for kt in range(2)] for b in range(2)]
    P = [[big.sub(32 + (b * 2 + qt) * 4, 4) for qt in range(2)] for b in range(2)]
    NM = [[big.sub(48 + (kt * 2 + qt) * 4, 4) for qt in range(2)] for kt in range(2)]
    OX = V(28, 4)
    L = [OX.sub(20, 4), OX.sub(24, 4)]
    E = V(8, 4); T = V(8, 4)
    ML = V(4)
    rp = V(); chk = V(); msk = V(); vF = V()
    t0 = V(); t1 = V(); t2 = V(); t3 = V()
    G2 = V(2);
    sw, shead, spair, styp = 's24', 's25', 's26', 's27'
    sK = ['s28', 's29']; sEnd, sJump, sD = 's30', 's31', 's32'
    sCnt, sPh, sIdle, sMode, sDiag, sNext, sPar, sPend = 's33', 's34', 's35', 's36', 's37', 's38', 's39', 's52'
    sQb, sU, sPo, sSp = 's53', 's54', 's62', 's63'
    def emit(lst):
        for it in lst:
            for x, tg in (it if isinstance(it, list) else [it]): k(x, tag=tg)

    k('s_cmp_ge_u32 s2, 256')
    k(f's_cbranch_scc1 {name}_end')
    k(f's_load_dwordx4 s[4:7], s[0:1], {ARG["dbg"]}')
    k(f's_load_dwordx2 s[58:59], s[0:1], {ARG["x"]}')
    k(f's_load_dwordx2 s[60:61], s[0:1], {ARG["w2"]}')
    if stamp: stamp_begin(k)
    k(f'v_and_b32 {lane}, 63, v0')
    k(f'v_lshrrev_b32 {t0}, 6, v0')
    k(f'v_readfirstlane_b32 {sw}, {t0}')
    k(f'v_lshlrev_b32 {l16}, 4, {lane}')
    k(f'v_lshl_add_u32 {vdma}, {t0}, 12, {l16}')
    k(f'v_mov_b32 {rp}, {l16}')
    k('s_and_b32 s40, s2, 7')
    k('s_lshr_b32 s41, s2, 3')
    k(f's_and_b32 {spair}, s41, 7')
    k(f's_bfe_u32 s42, s41, 0x10003')
    k(f's_lshl_b32 s40, s40, 1')
    k(f's_add_u32 {shead}, s40, s42')
    k(f's_lshr_b32 {styp}, s41, 4')
    k(f's_add_u32 s64, s40, {styp}')
    k(f's_and_b32 s65, s41, 15')
    VB = Alloc('v', big.i, big.i + 64)
    X = [[Reg('v', 128 + (rt * 14 + s) * 4, 4) for s in range(14)] for rt in range(2)]
    W = WSlab(k, VB, 32, 896, lane, sw, ldsbase=131072)
    XR = [VB(4), VB(4)]; WF = [[VB(4) for _ in range(2)] for _ in range(2)]; bacc = [[VB(4) for _ in range(2)] for _ in range(2)]
    va = [VB(), VB()]
    k(f'v_and_b32 {t0}, 15, {lane}')
    k(f's_lshl_b32 s40, {sw}, 5')
    k(f's_lshl_b32 s41, s64, 7')
    k(f's_add_u32 s40, s40, s41')
    k(f'v_add_u32 {t0}, s40, {t0}')
    k(f'v_mul_u32_u24 {va[0]}, 896, {t0}')
    k(f'v_lshrrev_b32 {t3}, 4, {lane}')
    k(f'v_lshl_add_u32 {va[0]}, {t3}, 4, {va[0]}')
    k(f'v_add_u32 {va[1]}, {16 * 896}, {va[0]}')
    k('s_lshl_b32 s66, s65, 6')
    W.setup_dma('s66', t0, t1, t2)
    dl = [-1, 1, -2, 2]
    vg = [[VB() for rt in range(2)] for _ in range(6)]
    for rt in range(2):
        for gi in range(4): k(f'v_add_u32 {vg[gi][rt]}, {hex((dl[gi] * 896) & 0xffffffff)}, {va[rt]}')
    k(f'v_cmp_gt_u32 vcc, 32, {lane}')
    for rt in range(2):
        k(f'v_cndmask_b32 {vg[4][rt]}, {vg[1][rt]}, {vg[0][rt]}, vcc')
        k(f'v_cndmask_b32 {vg[5][rt]}, {vg[3][rt]}, {vg[2][rt]}, vcc')
    k('s_waitcnt lgkmcnt(0)')
    srd(k, 16, 6, 256 * MB)
    lnb = k.newlabel('nob')
    k(f's_mov_b32 {sPend}, 0')
    k('s_cmp_ge_u32 s65, 14')
    k(f's_cbranch_scc1 {lnb}')
    srd(k, 68, 60, 448 * 896)
    srd(k, 72, 6, 2048 * 896, add=hex(WS_H))
    srd(k, 76, 58, 2048 * 896)
    W.dma(68, lambda i: 'w2')
    for s in range(14):
        gi = 4 if s == 3 else 5 if s == 10 else (4 * s) // 14
        for rt in range(2): k(f'buffer_load_dwordx4 {X[rt][s]}, {vg[gi][rt]}, s[72:75], 0 offen offset:{s * 64}')
    k(f'v_lshlrev_b32 {t0}, 3, {t3}')
    for rt in range(2):
        k(f'v_sub_u32 {va[rt]}, {va[rt]}, {t0}')
        for nt in range(2): k(f'buffer_load_dwordx2 {XR[rt].sub(2 * nt, 2)}, {va[rt]}, s[76:79], s66 offen offset:{nt * 32}')
    if opt.get('pstamp'): stamp_at(k, 0)
    W.setup_read(t0, t1, t2)
    k.label(lnb)
    la, lb7, ldone = k.newlabel('A'), k.newlabel('B7'), k.newlabel('segd')
    k(f's_sub_u32 {sQb}, 15, {spair}')
    k(f's_cmp_eq_u32 {styp}, 1')
    k(f's_cbranch_scc1 {la}')
    k(f's_cmp_eq_u32 {spair}, 7')
    k(f's_cbranch_scc1 {lb7}')
    k(f's_mov_b32 s55, {UA}')
    k(f's_lshl_b32 {sU}, {sQb}, 2')
    k(f's_sub_u32 {sU}, {sU}, {UA - 4}')
    k(f's_mov_b32 {sDiag}, 1'); k(f's_mov_b32 {sMode}, 1'); k(f's_mov_b32 {sNext}, 1'); k(f's_mov_b32 {sSp}, {(71 - UA) & 1}')
    k(f's_branch {ldone}')
    k.label(lb7)
    k(f's_mov_b32 {sQb}, 7'); k(f's_mov_b32 s55, 0'); k(f's_mov_b32 {sU}, 32')
    k(f's_mov_b32 {sDiag}, 1'); k(f's_mov_b32 {sMode}, 0'); k(f's_mov_b32 {sNext}, 0'); k(f's_mov_b32 {sSp}, 0')
    k(f's_branch {ldone}')
    k.label(la)
    k(f's_mov_b32 s55, 0'); k(f's_mov_b32 {sNext}, 0')
    k(f's_cmp_eq_u32 {spair}, 7')
    k(f's_cselect_b32 {sU}, 36, {UA}')
    k(f's_cselect_b32 {sDiag}, 1, 0')
    k(f's_cselect_b32 {sMode}, 0, 2')
    k(f's_and_b32 {sSp}, {sU}, 1')
    k.label(ldone)
    k(f's_add_u32 {sEnd}, s55, {sU}')
    k(f's_add_u32 {sEnd}, {sEnd}, {sNext}')
    k(f's_lshl_b32 {sEnd}, {sEnd}, 14')
    k(f's_cmp_eq_u32 {sNext}, 1')
    k(f's_cselect_b32 {sJump}, 0, {hex(WJ)}')
    k(f's_lshl_b32 s40, {shead}, 20')
    srd(k, 8, 6, WJ + 15 * 16384, add='s40')
    k(f's_add_u32 s40, s40, {hex(WS_V)}')
    srd(k, 12, 6, WJ + 14 * 16384, add='s40')
    srd(k, 20, 6, 256 * 128, add=hex(WS_FL))

    def kdma(sreg): return [(f'buffer_load_dwordx4 {vdma}, s[8:11], {sreg} offen offset:{i * 1024} lds', None) for i in range(4)]
    def vdma_(sreg): return [(f'buffer_load_dwordx4 {vdma}, s[12:15], {sreg} offen offset:{i * 1024} lds', None) for i in range(4)]
    def qloads(qbreg, tmp=('s40', 's41')):
        a, b = tmp
        Lq = [[(f's_lshl_b32 {a}, {shead}, 20', None), (f's_lshl_b32 {b}, {qbreg}, 16', None)], [(f's_add_u32 {a}, {a}, {b}', None), (f's_lshl_b32 {b}, {sw}, 14', None)],
              [(f's_add_u32 {a}, {a}, {b}', None), (f's_add_u32 {a}, {a}, {hex(WS_Q)}', None)]]
        for n in range(16):
            if n and n % 4 == 0: Lq.append([(f's_add_u32 {a}, {a}, 0x1000', None)])
            Lq.append((f'buffer_load_dwordx4 {Qf(n // 8, n % 8)}, {l16}, s[16:19], {a} offen offset:{(n % 4) * 1024}', None))
        return Lq
    k(f's_lshl_b32 {sD}, {sw}, 12')
    k(f's_lshl_b32 s42, {sSp}, 15'); k(f's_add_u32 s42, s42, {sD}')
    k(f's_lshl_b32 s43, s55, 14'); k('s_add_u32 s56, s43, 0x4000'); k('s_add_u32 s57, s43, 0x8000')
    k(f's_cmp_eq_u32 {sSp}, 0')
    k(f's_cselect_b32 {sK[1]}, s56, s57'); k(f's_cselect_b32 {sK[0]}, s57, s56')
    k(f's_cselect_b32 s40, 0x10000, 0'); k(f's_add_u32 {sD}, {sD}, s40')
    init = [[('s_mov_b32 m0, s42', None)]] + kdma('s43') + qloads(sQb) + [[('s_add_u32 m0, s42, 0x8000', None)]] + kdma('s56')
    init += [[('s_add_u32 m0, s42, 0x14000', None)]] + vdma_('s43') + [[('s_add_u32 m0, s42, 0x10000', None)]] + kdma('s57')
    lnb2, lb_done = k.newlabel('nob'), k.newlabel('bd')
    k('s_cmp_ge_u32 s65, 14')
    k(f's_cbranch_scc1 {lnb2}')
    k.wait('w2'); k('s_barrier')
    if opt.get('pstamp'): stamp_at(k, 1)
    ist = dict(items=list(init), keep=True, stride=2)
    rdb = lambda s: [x for nt in range(2) for x in W.reads(s, nt, WF[s % 2][nt])]
    emit(rdb(0))
    for s in range(14):
        if s + 1 < 14: emit(rdb(s + 1))
        M = [f'{MF} {bacc[rt][nt]}, {WF[s % 2][nt]}, {X[rt][s]}, {"0" if s == 0 else bacc[rt][nt]}' for nt in range(2) for rt in range(2)]
        lst, _ = pack(M, [ist]); emit(lst)
    emit(ist['items'])
    if opt.get('pstamp'): stamp_at(k, 2)
    st4 = T.sub(4, 4)
    k(f'v_mov_b32 {t3}, 0x3f803f80')
    for j in range(4): k(f'v_mov_b32 {st4[j]}, 0')
    k(f's_lshl_b32 s40, s64, 3'); k(f's_lshl_b32 s41, {sw}, 1'); k('s_add_u32 s40, s40, s41')
    k(f's_mul_i32 s41, s40, 14'); k('s_add_u32 s41, s41, s65'); k('s_lshl_b32 s41, s41, 10')
    k(f's_add_u32 s41, s41, {hex(WS_X1)}')
    for rt in range(2):
        for nt in range(2):
            a = bacc[rt][nt]
            k(f'v_cvt_pk_bf16_f32 {T[0]}, {a[0]}, {a[1]}')
            k(f'v_cvt_pk_bf16_f32 {T[1]}, {a[2]}, {a[3]}')
            for h in range(2):
                xr = XR[rt][2 * nt + h]
                k(f'v_lshlrev_b32 {a[2 * h]}, 16, {T[h]}')
                k(f'v_and_b32 {a[2 * h + 1]}, 0xffff0000, {T[h]}')
                k(f'v_lshlrev_b32 {T[2]}, 16, {xr}')
                k(f'v_and_b32 {T[3]}, 0xffff0000, {xr}')
                k(f'v_pk_add_f32 {a.sub(2 * h, 2)}, {a.sub(2 * h, 2)}, {T.sub(2, 2)}')
                k(f'v_cvt_pk_bf16_f32 {xr}, {a[2 * h]}, {a[2 * h + 1]}')
        if rt: k(f's_add_u32 s41, s41, {14 * 1024}')
        k(f'buffer_store_dwordx4 {XR[rt]}, {l16}, s[16:19], s41 offen sc1')
        for j in range(4):
            k(f'v_dot2c_f32_bf16 {st4[2 * rt]}, {XR[rt][j]}, {t3}')
            k(f'v_dot2c_f32_bf16 {st4[2 * rt + 1]}, {XR[rt][j]}, {XR[rt][j]}')
    xlane_sum(k, [st4[j] for j in range(4)], [T[j] for j in range(4)])
    k(f's_lshl_b32 s40, s40, 3'); k('s_add_u32 s40, s40, s65'); k('s_lshl_b32 s40, s40, 8')
    k(f's_add_u32 s40, s40, {hex(WS_ST)}')
    k('s_mov_b64 exec, 0xffff')
    k(f'buffer_store_dwordx4 {st4}, {l16}, s[16:19], s40 offen sc1')
    k('s_mov_b64 exec, -1')
    k(f's_mov_b32 {sPend}, 1')
    k(f's_lshl_b32 {sPo}, s64, 7')
    k(f's_branch {lb_done}')
    k.label(lnb2)
    emit(init)
    k.label(lb_done)
    k(f'v_mov_b32 {t0}, 0x3f803f80')
    for j in range(4): k(f'v_accvgpr_write_b32 {ONES[j]}, {t0}')
    k(f'v_mov_b32 {msk}, 0x40004000')
    k(f'v_lshrrev_b32 {t0}, 4, {lane}')
    k(f'v_lshlrev_b32 {t0}, 2, {t0}')
    k(f'v_and_b32 {t1}, 15, {lane}')
    for r in range(4):
        k(f'v_add_u32 {t2}, {r}, {t0}')
        k(f'v_cmp_le_u32 s[{44 + 2 * r}:{45 + 2 * r}], {t2}, {t1}')
    def zero_state():
        for i in range(0, 128, 2): k(f'v_mov_b64 v[{128 + i}:{129 + i}], 0')
        for qt in range(2):
            for j in (0, 2): k(f'v_mov_b64 {L[qt].sub(j, 2)}, 0')
        for kt in range(2):
            for qt in range(2):
                for j in (0, 2): k(f'v_mov_b64 {NM[kt][qt].sub(j, 2)}, 0')
        k(f'v_mov_b32 {ML[0]}, 0'); k(f'v_mov_b32 {ML[2]}, 0')
    def seg_counts():
        k(f's_sub_u32 {sIdle}, 3, {sw}')
        k(f's_mul_i32 {sIdle}, {sIdle}, {sDiag}')
        k(f's_sub_u32 {sCnt}, {sU}, {sIdle}')
        k(f's_sub_u32 {sCnt}, {sCnt}, 1')
    def apply_mask():
        k(f'v_mov_b32 {t0}, {hex(f2u(-1e30))}')
        for r in range(4):
            for q in range(2):
                k(f'v_cndmask_b32 {NM[q][q][r]}, {t0}, {NM[q][q][r]}, s[{44 + 2 * r}:{45 + 2 * r}]')
            k(f'v_mov_b32 {NM[1][0][r]}, {t0}')
    zero_state()
    seg_counts()

    def sync(first=False):
        k(f's_waitcnt vmcnt({28 if first else 16}) lgkmcnt(0)')
        k('s_barrier')
    def dma_items(par):
        r = sK[(par + 1) % 2]; o = sK[par]
        base = 0x8000 if par == 0 else 0
        it = [[(f's_add_u32 m0, {sD}, {hex(base + 0x4000)}', None)]]
        it += vdma_(r)
        it.append([(f's_add_u32 {r}, {o}, 0x4000', None)])
        it.append([(f's_cmp_eq_u32 {r}, {sEnd}', None), (f's_cselect_b32 {r}, {sJump}, {r}', None)])
        it.append([(f's_add_u32 m0, {sD}, {hex(base)}' if base else f's_mov_b32 m0, {sD}', None)])
        it += kdma(r)
        if par == 0: it.append([(f's_xor_b32 {sD}, {sD}, 0x10000', None)])
        return it
    def kreads(par, n=16): return [(f'ds_read_b128 {Kf(i // 8, i % 8)}, {rp} offset:{par * 32768 + i * 1024}', None) for i in range(n)]
    def vreads(par, n=16): return [(f'ds_read_b128 {Vf(i)}, {rp} offset:{par * 32768 + 16384 + i * 1024}', None) for i in range(n)]
    def rp_toggle(par): return [(f'v_xor_b32 {rp}, 0x10000, {rp}', None)] if par == 1 else []
    def g1(b):
        Lm = []
        for kt in range(2):
            for ds in range(8):
                for qt in range(2):
                    c = NM[kt][qt] if ds == 0 else S[b][kt][qt]
                    Lm.append(f'{MF} {S[b][kt][qt]}, {Kf(kt, ds)}, {Qf(qt, ds)}, {c}')
        return Lm
    def g2(b):
        Lm = []
        for dt in range(16):
            for qt in range(2):
                Lm.append(f'{MF} {O(dt, qt)}, {Vf(dt)}, {P[b][qt]}, {O(dt, qt)}')
        for qt in range(2):
            Lm.append(f'{MF} {L[qt]}, {ONES}, {P[b][qt]}, {L[qt]}')
        return Lm
    def softmax(b):
        G = []
        n = 0
        for kt in range(2):
            for qt in range(2):
                for h in range(2):
                    e0 = E[(2 * n) % 8]; e1 = E[(2 * n + 1) % 8]; n += 1
                    G.append([(f'v_exp_f32 {e0}, {S[b][kt][qt][2 * h]}', None), (f'v_exp_f32 {e1}, {S[b][kt][qt][2 * h + 1]}', None),
                              (f'v_cvt_pk_bf16_f32 {P[b][qt][kt * 2 + h]}, {e0}, {e1}', None)])
        return G
    NP1 = opt.get('np1', 5)
    def sm_flat(G):
        out = []
        for i, g in enumerate(G): out += g
        return out
    def sm_pipe(G):
        out = []
        for i, g in enumerate(G):
            out += g[:2]
            if i > 0: out.append(G[i - 1][2])
        if G: out.append(G[-1][2])
        return out
    def check(b):
        p = [P[b][0][j] for j in range(4)] + [P[b][1][j] for j in range(4)]
        return [(f'v_or3_b32 {chk}, {p[0]}, {p[1]}, {p[4]}', None), (f'v_or3_b32 {chk}, {chk}, {p[5]}, {p[2]}', None),
                (f'v_or3_b32 {chk}, {chk}, {p[3]}, {p[6]}', None), (f'v_bitop3_b32 {chk}, {chk}, {p[7]}, {msk} bitop3:0xa8', None),
                (f'v_cmp_ne_u32 vcc, 0, {chk}', None)]
    def rowmax_delta(b, init):
        for qt, d in ((0, t2), (1, t3)):
            a = S[b][0][qt]; c = S[b][1][qt]
            k(f'v_max3_f32 {d}, {a[0]}, {a[1]}, {a[2]}')
            k(f'v_max3_f32 {d}, {d}, {a[3]}, {c[0]}')
            k(f'v_max3_f32 {d}, {d}, {c[1]}, {c[2]}')
            k(f'v_max_f32 {d}, {d}, {c[3]}')
        for op in ('v_permlane32_swap_b32', 'v_permlane16_swap_b32'):
            k(f'v_mov_b32 {t0}, {t2}'); k(f'v_mov_b32 {t1}, {t3}')
            k(f'{op} {t2}, {t0}'); k(f'{op} {t3}, {t1}')
            k(f'v_max_f32 {t2}, {t2}, {t0}'); k(f'v_max_f32 {t3}, {t3}, {t1}')
        for d in (t2, t3):
            k(f'v_add_f32 {d}, {hex(f2u(BIAS))}, {d}')
            if not init: k(f'v_max_f32 {d}, 0, {d}')
    def sub_delta(regs2):
        for kt in range(2):
            for qt, d in ((0, t2), (1, t3)):
                for j in range(4): k(f'v_sub_f32 {regs2[kt][qt][j]}, {regs2[kt][qt][j]}, {d}')
    def rescale(b, other_live, ret):
        rowmax_delta(b, False)
        sub_delta(S[b])
        if other_live: sub_delta(S[1 - b])
        sub_delta(NM)
        k(f'v_sub_f32 {ML[0]}, {ML[0]}, {t2}'); k(f'v_sub_f32 {ML[2]}, {ML[2]}, {t3}')
        k(f'v_exp_f32 {t2}, -{t2}'); k(f'v_exp_f32 {t3}, -{t3}')
        for dt in range(16):
            for qt, d in ((0, t2), (1, t3)):
                for j in range(4): k(f'v_mul_f32 {O(dt, qt)[j]}, {O(dt, qt)[j]}, {d}')
        for qt, d in ((0, t2), (1, t3)):
            for j in range(4): k(f'v_mul_f32 {L[qt][j]}, {L[qt][j]}, {d}')
        emit(sm_pipe(softmax(b)))
        k(f's_branch {ret}')
    lab = lambda s, par: f'{name}_{s}{par}'
    def flag_load():
        k(f's_lshl_b32 s40, {shead}, 3'); k(f's_add_u32 s40, s40, {spair}'); k('s_add_u32 s40, s40, 16'); k('s_lshl_b32 s40, s40, 7')
        k(f'v_mov_b32 {t0}, s40')
        k(f's_lshl_b32 s40, {sQb}, 7')
        k(f'v_writelane_b32 {t0}, s40, 0')
        k(f'buffer_load_dword {vF}, {t0}, s[20:23], 0 offen sc1')

    if opt.get('pstamp'): stamp_at(k, 3)
    sync(first=True)
    if stamp and not opt.get('pstamp'): stamp_at(k, 0)
    k(f's_cmp_eq_u32 {sSp}, 1')
    k(f's_cbranch_scc1 {lab("pre", 1)}')
    for par in range(2):
        k.label(lab('pre', par))
        emit(kreads(par)); emit(rp_toggle(par)); emit(dma_items(par))
        k(f's_branch {lab("P", 1 - par)}')

    for par in range(2):
        k.label(lab('P', par))
        k(f's_cmp_lg_u32 {sCnt}, 0')
        lskip = k.newlabel('nm')
        k(f's_cbranch_scc1 {lskip}')
        apply_mask()
        flag_load()
        k.label(lskip)
        sync()
        lst, _ = pack(g1(par), [dict(items=dma_items(par), stride=3)])
        emit(lst)
        emit(kreads(par)); emit(rp_toggle(par))
        rowmax_delta(par, True)
        sub_delta(S[par]); sub_delta(NM)
        k(f'v_sub_f32 {ML[0]}, {ML[0]}, {t2}'); k(f'v_sub_f32 {ML[2]}, {ML[2]}, {t3}')
        emit(sm_pipe(softmax(par)[:NP1]))
        lnp = k.newlabel('np')
        k(f's_cmp_eq_u32 {sPend}, 0')
        k(f's_cbranch_scc1 {lnp}')
        k('s_waitcnt vmcnt(0)')
        k(f'v_mov_b32 {t0}, {sPend}')
        k('s_mov_b64 exec, 1')
        k(f'buffer_atomic_add {t0}, off, s[20:23], {sPo} sc1')
        k('s_mov_b64 exec, -1')
        k(f's_mov_b32 {sPend}, 0')
        k.label(lnp)
        k(f's_cmp_eq_u32 {sCnt}, 0')
        k(f's_cbranch_scc1 {lab("T", 1 - par)}')
        k(f's_mov_b32 {sPh}, 0')
        k(f's_sub_u32 {sCnt}, {sCnt}, 2')
        k(f's_cbranch_scc1 {lab("H", 1 - par)}')
        k(f's_branch {lab("M", 1 - par)}')

    for par in range(2):
        k.label(lab('H', par))
        k(f's_cmp_eq_u32 {sPh}, 1')
        k(f's_cbranch_scc1 {lab("T", par)}')
        k(f's_mov_b32 {sPh}, 1')
        k(f's_mov_b32 {sCnt}, 0')
        flag_load()
        k(f's_cmp_eq_u32 {sDiag}, 0')
        k(f's_cbranch_scc1 {lab("M", par)}')
        apply_mask()
        k(f's_branch {lab("M", par)}')

    k.raw('.p2align 6')
    for par in range(2):
        k.label(lab('M', par))
        sync()
        dm = dma_items(par)
        sm2 = sm_flat(softmax(1 - par)[NP1:]) + check(1 - par)
        lst, left = pack(g1(par), [dict(items=dm[:8], start=2, stride=opt.get('ds1', 7)), dict(items=vreads(par), stride=opt.get('rs', 1.5)), dict(items=sm2)])
        assert left == 0, left
        emit(lst)
        k('s_waitcnt lgkmcnt(0)')
        k(f's_cbranch_vccnz {lab("R", par)}')
        k.label(lab('Rr', par))
        lst, left = pack(g2(1 - par), [dict(items=dm[8:], start=2, stride=opt.get('ds2', 8)), dict(items=kreads(par) + rp_toggle(par), stride=opt.get('rs2', 1.5)), dict(items=sm_flat(softmax(par)[:NP1]), start=1)])
        assert left == 0, left
        emit(lst)
        k(f's_sub_u32 {sCnt}, {sCnt}, 1')
        k(f's_cbranch_scc1 {lab("H", 1 - par)}')
        if par == 1: k(f's_branch {lab("M", 0)}')

    for par in range(2):
        k.label(lab('R', par))
        rescale(1 - par, True, lab('Rr', par))
        k.label(lab('RT', par))
        rescale(1 - par, False, lab('RTr', par))

    X1 = lambda qt, ks: Reg('a', (ks * 2 + qt) * 4 if ks < 8 else 192 + ((ks - 8) * 2 + qt) * 4, 4)
    SPT = OX.sub(0, 16)
    PML = OX.sub(16, 4)
    def part_base():
        k(f's_lshl_b32 s40, {shead}, 3')
        k(f's_add_u32 s40, s40, {spair}')
        k(f's_mul_i32 s42, s40, {PART_STRIDE}')
        k(f's_add_u32 s42, s42, {hex(WS_P)}')
        k(f's_lshl_b32 s41, {sw}, 14')
        k(f's_add_u32 s43, s42, s41')
        k(f's_lshl_b32 s41, {sw}, 10')
        k(f's_add_u32 s42, s42, s41')
        k(f's_add_u32 s42, s42, 0x10000')
    PZ = [big.sub(4 * n, 4) for n in range(8)] + [big.sub(40 + 4 * n, 4) for n in range(6)] + [T.sub(0, 4), T.sub(4, 4)]
    for par in range(2):
        k.label(lab('T', par))
        lq, lfin, lgo, lpoll = k.newlabel('nq'), k.newlabel('tf'), k.newlabel('go'), k.newlabel('poll')
        k(f's_cmp_eq_u32 {sNext}, 0')
        k(f's_cbranch_scc1 {lfin}')
        sync()
        emit(vreads(par))
        emit(qloads(spair))
        k(f's_branch {lq}')
        k.label(lfin)
        k('s_mov_b32 s57, 0')
        k.label(lpoll)
        k(f'v_readlane_b32 s56, {vF}, 1')
        k(f'v_readlane_b32 s43, {vF}, 0')
        k(f's_cmp_eq_u32 {sMode}, 2'); k('s_cselect_b32 s56, s56, 4')
        k('s_add_u32 s56, s56, s43')
        k('s_cmp_eq_u32 s56, 60')
        k(f's_cbranch_scc1 {lgo}')
        k('s_sleep 4')
        flag_load()
        k('s_add_u32 s57, s57, 1')
        k('s_cmp_lt_u32 s57, 0x40000')
        k(f's_cbranch_scc1 {lpoll}')
        k.label(lgo)
        sync()
        emit(vreads(par))
        k(f's_lshl_b32 s56, {sQb}, 3'); k(f's_lshl_b32 s41, {sw}, 1'); k('s_add_u32 s56, s56, s41')
        k('s_lshl_b32 s40, s56, 11'); k(f's_add_u32 s40, s40, {hex(WS_ST)}')
        for i in range(4): k(f'buffer_load_dwordx4 {SPT.sub(4 * i, 4)}, {l16}, s[16:19], s40 offen offset:{i * 1024} sc1')
        k(f'v_and_b32 {t0}, 15, {lane}'); k(f'v_lshlrev_b32 {t0}, 2, {t0}')
        k('s_lshl_b32 s40, s56, 6'); k(f's_add_u32 s40, s40, {hex(WS_G)}')
        for qt in range(2): k(f'buffer_load_dword {G2[qt]}, {t0}, s[16:19], s40 offen offset:{qt * 64}')
        if par == 1:
            lnm = k.newlabel('nm')
            k(f's_cmp_lg_u32 {sMode}, 2'); k(f's_cbranch_scc1 {lnm}')
            part_base()
            k(f'buffer_load_dwordx4 {PML}, {l16}, s[16:19], s42 offen sc1')
            k.label(lnm)
        k.label(lq)
        emit(sm_pipe(softmax(1 - par)[NP1:]) + check(1 - par))
        k(f's_cbranch_vccnz {lab("RT", par)}')
        k.label(lab('RTr', par))
        lx, lx2 = k.newlabel('nx'), k.newlabel('nx')
        k(f's_cmp_lg_u32 {sNext}, 0'); k(f's_cbranch_scc1 {lx}')
        if par == 1:
            k(f's_cmp_lg_u32 {sMode}, 2'); k(f's_cbranch_scc1 {lx2}')
            for n in range(16):
                if n % 4 == 0: k(f's_add_u32 s41, s43, {hex(n * 1024)}')
                k(f'buffer_load_dwordx4 {PZ[n]}, {l16}, s[16:19], s41 offen offset:{(n % 4) * 1024} sc1')
            k.label(lx2)
        k(f's_mul_i32 s66, s56, {14 * 1024}'); k(f's_add_u32 s66, s66, {hex(WS_X1)}')
        k(f's_add_u32 s67, s66, {14 * 1024}')
        xl = []
        for ks in range(14):
            if ks and ks % 4 == 0: xl.append([('s_add_u32 s66, s66, 0x1000', None), ('s_add_u32 s67, s67, 0x1000', None)])
            for qt in range(2): xl.append((f'buffer_load_dwordx4 {X1(qt, ks)}, {l16}, s[16:19], s{66 + qt} offen offset:{(ks % 4) * 1024} sc1', None))
        lst, left = pack(g2(1 - par), [dict(items=dma_items(par) + xl, stride=2), dict(items=kreads(par) + rp_toggle(par), start=1)])
        emit(lst)
        k(f's_branch {lab("I", 1 - par)}')
        k.label(lx)
        lst, left = pack(g2(1 - par), [dict(items=dma_items(par), stride=3), dict(items=kreads(par) + rp_toggle(par), start=4)])
        emit(lst)
        k(f's_branch {lab("I", 1 - par)}')
    for par in range(2):
        k.label(lab('I', par))
        k(f's_mov_b32 {sPar}, {par}')
        k(f's_sub_u32 {sIdle}, {sIdle}, 1')
        k(f's_cbranch_scc1 {name}_epi')
        sync()
        emit(kreads(par)); emit(rp_toggle(par)); emit(dma_items(par))
        if par == 1: k(f's_branch {lab("I", 0)}')

    k.label(f'{name}_epi')
    lfinal = k.newlabel('final')
    k(f's_cmp_eq_u32 {sNext}, 0')
    k(f's_cbranch_scc1 {lfinal}')
    part_base()
    sc = [T.sub(0, 2), T.sub(2, 2)]
    for qt in range(2): k(f'v_rcp_f32 {sc[qt][0]}, {L[qt][0]}')
    for qt in range(2): k(f'v_mov_b32 {sc[qt][1]}, {sc[qt][0]}')
    n = 0
    for qt in range(2):
        for u in range(8):
            pk_ = big.sub((n % 8) * 4, 4); n += 1
            for d in (2 * u, 2 * u + 1):
                for j in (0, 2): k(f'v_pk_mul_f32 {O(d, qt).sub(j, 2)}, {O(d, qt).sub(j, 2)}, {sc[qt]}')
            for j in range(4):
                o = O(2 * u + j // 2, qt)
                k(f'v_cvt_pk_bf16_f32 {pk_[j]}, {o[(j % 2) * 2]}, {o[(j % 2) * 2 + 1]}')
            if u % 4 == 0: k(f's_add_u32 s41, s43, {hex(qt * 8192 + u * 1024)}')
            k(f'buffer_store_dwordx4 {pk_}, {l16}, s[16:19], s41 offen offset:{(u % 4) * 1024} sc1')
    k(f'v_mov_b32 {ML[1]}, {L[0][0]}'); k(f'v_mov_b32 {ML[3]}, {L[1][0]}')
    k(f'buffer_store_dwordx4 {ML}, {l16}, s[16:19], s42 offen sc1')
    k(f's_mov_b32 {sPend}, 1')
    k(f's_add_u32 {sPo}, s40, 16'); k(f's_lshl_b32 {sPo}, {sPo}, 7')
    k(f's_mov_b32 {sQb}, {spair}')
    k(f's_lshl_b32 {sU}, {spair}, 2'); k(f's_add_u32 {sU}, {sU}, 4')
    k(f's_mov_b32 {sMode}, 0'); k(f's_mov_b32 {sNext}, 0')
    k(f's_lshl_b32 {sEnd}, {sU}, 14')
    k(f's_mov_b32 {sJump}, {hex(WJ)}')
    zero_state()
    seg_counts()
    k(f's_cmp_eq_u32 {sPar}, 0')
    k(f's_cbranch_scc1 {lab("P", 0)}')
    k(f's_branch {lab("P", 1)}')

    k.label(lfinal)
    if stamp and not opt.get('pstamp'): stamp_at(k, 1)
    k(f'v_cmp_gt_u32 vcc, 32, {lane}')
    for j in range(4): k(f'v_cndmask_b32 {SPT[12 + j]}, 0, {SPT[12 + j]}, vcc')
    for j in (0, 2):
        k(f'v_pk_add_f32 {SPT.sub(j, 2)}, {SPT.sub(j, 2)}, {SPT.sub(4 + j, 2)}')
        k(f'v_pk_add_f32 {SPT.sub(8 + j, 2)}, {SPT.sub(8 + j, 2)}, {SPT.sub(12 + j, 2)}')
        k(f'v_pk_add_f32 {SPT.sub(j, 2)}, {SPT.sub(j, 2)}, {SPT.sub(8 + j, 2)}')
    xlane_sum(k, [SPT[j] for j in range(4)], [SPT[4 + j] for j in range(4)])
    k(f's_mov_b32 s40, {hex(f2u(1.0 / 448))}')
    C0 = [chk, msk]; C1 = [ML[1], ML[3]]; CQ = [vF, lane]
    NMU = [E.sub(0, 2), E.sub(2, 2)]
    k(f'v_lshrrev_b32 {t3}, 4, {lane}')
    k(f'v_lshlrev_b32 {t3}, 4, {t3}')
    for qt in range(2):
        mu = NMU[qt][0]
        k(f'v_mul_f32 {mu}, s40, {SPT[2 * qt]}')
        k(f'v_mul_f32 {t0}, {mu}, {mu}')
        k(f'v_fma_f32 {t0}, {SPT[2 * qt + 1]}, s40, -{t0}')
        k(f'v_max_f32 {t0}, 0, {t0}')
        k(f'v_add_f32 {t0}, {hex(f2u(1e-5))}, {t0}')
        k(f'v_rsq_f32 {t0}, {t0}')
        k(f'v_sub_f32 {mu}, 0, {mu}')
        k(f'v_mov_b32 {NMU[qt][1]}, {mu}')
        k(f'v_mul_f32 {C0[qt]}, {hex(f2u(GK0))}, {t0}')
        k(f'v_mul_f32 {t1}, {t0}, {t0}')
        k(f'v_mul_f32 {t1}, {t1}, {t0}')
        k(f'v_mul_f32 {C1[qt]}, {hex(f2u(GK1))}, {t1}')
        k(f'v_sub_f32 {t1}, 1.0, {G2[qt]}')
        k(f'v_mul_f32 {t1}, {t1}, {t0}')
        k(f'v_rcp_f32 {t1}, {t1}')
        k(f'v_min_f32 {CQ[qt]}, {hex(f2u(1e30))}, {t1}')
    al = [E.sub(4, 2), E.sub(6, 2)]; be = [PML.sub(0, 2), PML.sub(2, 2)]
    lm, lpk = k.newlabel('merge'), k.newlabel('pack')
    CSZ = [OX.sub(4 * n, 4) for n in range(4)] + [L[0], L[1], big.sub(32, 4)]
    def cs_loads():
        k(f's_mul_i32 s40, {shead}, 448'); k(f's_add_u32 s40, s40, {hex(WS_CS)}')
        for nt in range(7): k(f'buffer_load_dwordx4 {CSZ[nt]}, {t3}, s[16:19], s40 offen offset:{nt * 64}')
    def scale_o():
        for dt in range(16):
            for qt in range(2):
                for j in (0, 2): k(f'v_pk_mul_f32 {O(dt, qt).sub(j, 2)}, {O(dt, qt).sub(j, 2)}, {al[qt]}')
    k(f's_cmp_eq_u32 {sMode}, 2')
    k(f's_cbranch_scc1 {lm}')
    for qt in range(2): k(f'v_rcp_f32 {al[qt][0]}, {L[qt][0]}')
    for qt in range(2): k(f'v_mul_f32 {al[qt][0]}, {al[qt][0]}, {G2[qt]}')
    for qt in range(2): k(f'v_mov_b32 {al[qt][1]}, {al[qt][0]}')
    cs_loads()
    scale_o()
    k(f's_branch {lpk}')
    k.label(lm)
    for qt in range(2):
        nA = ML[2 * qt]; nB = PML[2 * qt]; lB = PML[2 * qt + 1]
        k(f'v_min_f32 {t0}, {nA}, {nB}')
        k(f'v_sub_f32 {t1}, {t0}, {nA}')
        k(f'v_sub_f32 {t2}, {t0}, {nB}')
        k(f'v_exp_f32 {t1}, {t1}')
        k(f'v_exp_f32 {t2}, {t2}')
        k(f'v_mul_f32 {t2}, {t2}, {lB}')
        k(f'v_fma_f32 {t0}, {t1}, {L[qt][0]}, {t2}')
        k(f'v_rcp_f32 {t0}, {t0}')
        k(f'v_mul_f32 {t0}, {t0}, {G2[qt]}')
        k(f'v_mul_f32 {al[qt][0]}, {t1}, {t0}')
        k(f'v_mul_f32 {be[qt][0]}, {t2}, {t0}')
        k(f'v_mov_b32 {al[qt][1]}, {al[qt][0]}')
        k(f'v_mov_b32 {be[qt][1]}, {be[qt][0]}')
    cs_loads()
    scale_o()
    U2 = big.sub(36, 4)
    for qt in range(2):
        for u in range(8):
            src = PZ[qt * 8 + u]
            for j in range(4):
                e = U2.sub((j % 2) * 2, 2)
                k(f'v_lshlrev_b32 {e[0]}, 16, {src[j]}')
                k(f'v_and_b32 {e[1]}, 0xffff0000, {src[j]}')
                o = O(2 * u + j // 2, qt).sub((j % 2) * 2, 2)
                k(f'v_pk_fma_f32 {o}, {e}, {be[qt]}, {o}')
    k.label(lpk)
    cacc = [[big.sub((qt * 7 + nt) * 4, 4) for nt in range(7)] for qt in range(2)]
    for nt in (6, 0, 1, 2, 3, 4, 5):
        for qt in range(2):
            for j in (0, 2): k(f'v_pk_mul_f32 {cacc[qt][nt].sub(j, 2)}, {CSZ[nt].sub(j, 2)}, {NMU[qt]}')
    CF = lambda qt, u: O(2 * u, qt)
    packs = []
    for u in range(8):
        for qt in range(2):
            a = O(2 * u, qt); b = O(2 * u + 1, qt)
            packs += [(f'v_cvt_pk_bf16_f32 {a[0]}, {a[0]}, {a[1]}', None), (f'v_cvt_pk_bf16_f32 {a[1]}, {a[2]}, {a[3]}', None),
                      (f'v_cvt_pk_bf16_f32 {a[2]}, {b[0]}, {b[1]}', None), (f'v_cvt_pk_bf16_f32 {a[3]}, {b[2]}, {b[3]}', None)]
    vq = [O(2 * u + 1, qt) for u in range(8) for qt in range(2)] + [OX.sub(4 * n, 4) for n in range(7)] + [big.sub(56, 4)]
    def oacc(qt, nt):
        if nt < 16:
            i = nt * 2 + qt
            return Reg('a', i * 4 if i < 16 else 192 + (i - 16) * 4, 4)
        return vq[(nt - 16) * 2 + qt]
    UF = lambda qt, ks: cacc[qt][2 * ks]
    NG = opt.get('ng', 4)
    gt = [E.sub(0, 4), E.sub(4, 4), T.sub(0, 4), T.sub(4, 4)]
    gstreams = [[] for _ in range(NG)]
    units = [(qt, ks) for ks in range(4) for qt in range(2)]
    for ui, (qt, ks) in enumerate(units):
        g_ = gstreams[ui % NG]; tt = gt[ui % NG]
        for nt in (2 * ks, 2 * ks + 1):
            if nt > 6: continue
            a = cacc[qt][nt]
            for j in range(4): g_.append((f'v_mul_f32 {tt[j]}, {a[j]}, {a[j]}', None))
            for j in range(4): g_.append((f'v_fma_f32 {tt[j]}, {tt[j]}, {C1[qt]}, {C0[qt]}', None))
            for j in range(4): g_.append((f'v_mul_f32 {tt[j]}, {tt[j]}, {a[j]}', None))
            for j in range(4): g_.append((f'v_exp_f32 {tt[j]}, {tt[j]}', None))
            for j in range(4): g_.append((f'v_fma_f32 {tt[j]}, {tt[j]}, {CQ[qt]}, {CQ[qt]}', None))
            for j in range(4): g_.append((f'v_rcp_f32 {tt[j]}, {tt[j]}', None))
            for j in range(4): g_.append((f'v_mul_f32 {a[j]}, {a[j]}, {tt[j]}', None))
            d = UF(qt, ks); o = (nt % 2) * 2
            g_.append((f'v_cvt_pk_bf16_f32 {d[o]}, {a[0]}, {a[1]}', None))
            g_.append((f'v_cvt_pk_bf16_f32 {d[o + 1]}, {a[2]}, {a[3]}', None))
        if ks == 3:
            g_.append((f'v_mov_b32 {UF(qt, 3)[2]}, 0', None)); g_.append((f'v_mov_b32 {UF(qt, 3)[3]}, 0', None))
    k(f's_lshl_b32 s40, {shead}, 7'); k(f's_lshl_b32 s41, {sQb}, 3'); k('s_add_u32 s40, s40, s41')
    k(f's_lshl_b32 s41, {sw}, 1'); k('s_add_u32 s40, s40, s41')
    k(f's_mul_i32 s66, s40, {14 * 1024}'); k(f's_add_u32 s66, s66, {hex(WS_OP)}')
    k(f's_add_u32 s67, s66, {14 * 1024}')
    ostreams = [[], []]; oready = [[], []]
    otmp = [E, T]; opk = [[cacc[0][1], cacc[0][3], cacc[0][5]], [cacc[1][1], cacc[1][3], cacc[1][5]]]
    for u in range(14):
        for qt in range(2):
            o_ = ostreams[qt]; n0 = len(o_)
            a = oacc(qt, 2 * u); b = oacc(qt, 2 * u + 1)
            if a.kind == 'a':
                tt = otmp[qt]
                for j in range(4): o_.append((f'v_accvgpr_read_b32 {tt[j]}, {a[j]}', None))
                for j in range(4): o_.append((f'v_accvgpr_read_b32 {tt[4 + j]}, {b[j]}', None))
                a = tt.sub(0, 4); b = tt.sub(4, 4)
            p = opk[qt][u % 3]
            o_ += [(f'v_cvt_pk_bf16_f32 {p[0]}, {a[0]}, {a[1]}', None), (f'v_cvt_pk_bf16_f32 {p[1]}, {a[2]}, {a[3]}', None),
                   (f'v_cvt_pk_bf16_f32 {p[2]}, {b[0]}, {b[1]}', None), (f'v_cvt_pk_bf16_f32 {p[3]}, {b[2]}, {b[3]}', None)]
            if u and u % 4 == 0: o_.append([(f's_add_u32 s{66 + qt}, s{66 + qt}, 0x1000', None)])
            o_.append((f'buffer_store_dwordx4 {p}, {l16}, s[16:19], s{66 + qt} offen offset:{(u % 4) * 1024}' + opt.get('opmod', ''), None))
            oready[qt] += [2 * (NC_F + NO_F + 8 * u + 7) + 1 + 4] * (len(o_) - n0)
    NF = NC_F + NO_F + NU_F
    pst = dict(items=packs, keep=True)
    gst = [dict(items=g_, keep=True, rr=True) for g_ in gstreams]
    ost = [dict(items=o_, keep=True, rr=True) for o_ in ostreams]
    odone = [0, 0]
    NH = (NF + 15) // 16
    for h in range(NH):
        par = (h // 2) % 2
        B = (lambda i: Kf(i // 8, i % 8)) if h % 2 == 0 else Vf
        M = []
        for f in range(16 * h, min(NF, 16 * h + 16)):
            b = B(f - 16 * h)
            for qt in range(2):
                if f < NC_F:
                    ks, nt = divmod(f, 7)
                    M.append(f'{MF} {cacc[qt][nt]}, {b}, {X1(qt, ks)}, {cacc[qt][nt]}')
                elif f < NC_F + NO_F:
                    ks, nt = divmod(f - NC_F, 28)
                    M.append(f'{MF} {oacc(qt, nt)}, {b}, {CF(qt, ks)}, {"0" if ks == 0 else oacc(qt, nt)}')
                else:
                    nt, ks = divmod(f - NC_F - NO_F, 4)
                    M.append(f'{MF} {oacc(qt, nt)}, {b}, {UF(qt, ks)}, {oacc(qt, nt)}')
        g0 = 32 * h
        st = []
        nxt_n = max(0, min(16, NF - 16 * (h + 1)))
        if h % 2 == 0:
            m = h // 2
            if m < 3: k('s_waitcnt vmcnt(16) lgkmcnt(0)')
            else: k.wait(f'tw{m}'); k('s_waitcnt lgkmcnt(0)')
            k('s_barrier')
            dm = dma_items(par) if m + 3 <= 13 else []
            dm = [[(x, f'tw{m + 3}') for x, _ in it] if isinstance(it, list) else (it[0], f'tw{m + 3}') for it in dm]
            st.append(dict(items=dm[:8], start=2, stride=7))
            st.append(dict(items=vreads(par, nxt_n), stride=1.5))
        else:
            k('s_waitcnt lgkmcnt(0)')
            st.append(dict(items=dm[8:], start=2, stride=7))
            st.append(dict(items=kreads(par, nxt_n) + rp_toggle(par), stride=1.5))
        if pst['items']:
            if g0 + 32 > 2 * NC_F: pst['by'] = {2 * NC_F - g0 - 2: 9999}
            st.append(pst)
        gs = 2 * NC_F + 4 - g0
        if gs < 32:
            for s_ in gst:
                if not s_['items']: continue
                s_['start'] = max(0, gs)
                ge = 2 * (NC_F + NO_F) - g0
                if ge < 32: s_['by'] = {max(0, ge - 2): 9999}
                st.append(s_)
        for qt in range(2):
            if g0 + 32 > oready[qt][0]:
                ost[qt]['gate'] = (lambda qt_, g0_, od: (lambda gi, p: g0_ + gi >= oready[qt_][od + p]))(qt, g0, odone[qt])
                st.insert(1, ost[qt])
        before = [len(o_['items']) for o_ in ost]
        lst, left = pack(M, st)
        for qt in range(2): odone[qt] += before[qt] - len(ost[qt]['items'])
        if opt.get('verbose'): print('tail half', h, 'overflow', left, 'pack', len(pst['items']), 'gelu', [len(s_['items']) for s_ in gst], 'out', [len(o_['items']) for o_ in ost])
        emit(lst)
    if stamp and not opt.get('pstamp'): stamp_at(k, 2)
    a_, b_ = ost[0]['items'], ost[1]['items']
    while a_ or b_:
        if a_: emit([a_.pop(0)])
        if b_: emit([b_.pop(0)])
    if stamp:
        if not opt.get('pstamp'): stamp_at(k, 3)
        stamp_end(k, 16, t0, t1)
    k.label(f'{name}_end')
    k('s_endpgm')
    k.finalize()
    return k

def gen_red(name='red_kernel', stamp=False):
    k = Kernel(name); V = Alloc('v', 1, 128)
    k('s_cmp_ge_u32 s2, 256')
    k(f's_cbranch_scc1 {name}_end')
    k(f's_load_dwordx2 s[4:5], s[0:1], {ARG["out"]}')
    k(f's_load_dwordx2 s[6:7], s[0:1], {ARG["ws"]}')
    if stamp: stamp_begin(k)
    lane = V(); t0 = V(); t1 = V(); vo = V(); g = V(); va = V()
    P = [V(4) for _ in range(16)]; X = V(4); A = V(8, 4); T = V(2)
    k(f'v_and_b32 {lane}, 63, v0')
    k(f'v_lshrrev_b32 {t0}, 6, v0')
    k(f'v_readfirstlane_b32 s20, {t0}')
    k(f's_mul_i32 s21, s2, {7 * 1024}')
    k(f'v_lshlrev_b32 {va}, 4, v0')
    k('s_waitcnt lgkmcnt(0)')
    srd(k, 12, 6, 256 * MB)
    k(f's_add_u32 s22, s21, {hex(WS_OP)}')
    for h in range(16):
        k(f'buffer_load_dwordx4 {P[h]}, {va}, s[12:15], s22 offen')
        if h < 15: k(f's_add_u32 s22, s22, {128 * 14 * 1024}')
    k(f's_add_u32 s22, s21, {hex(WS_X1)}')
    k(f'buffer_load_dwordx4 {X}, {va}, s[12:15], s22 offen')
    k(f'v_and_b32 {t0}, 15, {lane}')
    k('s_lshr_b32 s23, s2, 1'); k('s_lshl_b32 s23, s23, 4')
    k(f'v_add_u32 {t0}, s23, {t0}')
    k(f'v_lshlrev_b32 {t1}, 2, {t0}')
    k(f's_mov_b32 s22, {hex(WS_G)}')
    k(f'buffer_load_dword {g}, {t1}, s[12:15], s22 offen')
    srd(k, 8, 4, 2048 * 896)
    k(f'v_mul_u32_u24 {vo}, 896, {t0}')
    k(f'v_bfe_u32 {t1}, {lane}, 4, 1')
    k(f'v_lshl_add_u32 {vo}, {t1}, 5, {vo}')
    k(f'v_lshrrev_b32 {t1}, 5, {lane}')
    k(f'v_lshl_add_u32 {vo}, {t1}, 4, {vo}')
    k('s_and_b32 s23, s2, 1'); k('s_mul_i32 s23, s23, 7'); k('s_add_u32 s23, s23, s20'); k('s_lshl_b32 s23, s23, 6')
    for h in range(16):
        for j in range(4):
            if h == 0:
                k(f'v_lshlrev_b32 {A[2 * j]}, 16, {P[h][j]}')
                k(f'v_and_b32 {A[2 * j + 1]}, 0xffff0000, {P[h][j]}')
            else:
                k(f'v_lshlrev_b32 {T[0]}, 16, {P[h][j]}')
                k(f'v_and_b32 {T[1]}, 0xffff0000, {P[h][j]}')
                k(f'v_pk_add_f32 {A.sub(2 * j, 2)}, {A.sub(2 * j, 2)}, {T}')
    k(f'v_sub_f32 {g}, 1.0, {g}')
    for j in range(4):
        k(f'v_lshlrev_b32 {T[0]}, 16, {X[j]}')
        k(f'v_and_b32 {T[1]}, 0xffff0000, {X[j]}')
        k(f'v_fma_f32 {A[2 * j]}, {T[0]}, {g}, {A[2 * j]}')
        k(f'v_fma_f32 {A[2 * j + 1]}, {T[1]}, {g}, {A[2 * j + 1]}')
    for j in range(4): k(f'v_cvt_pk_bf16_f32 {X[j]}, {A[2 * j]}, {A[2 * j + 1]}')
    k(f'v_permlane16_swap_b32 {X[0]}, {X[2]}')
    k(f'v_permlane16_swap_b32 {X[1]}, {X[3]}')
    k(f'buffer_store_dwordx4 {X}, {vo}, s[8:11], s23 offen')
    if stamp:
        for i in range(4): stamp_at(k, i)
        stamp_end(k, 12, t0, t1)
    k.label(f'{name}_end')
    k('s_endpgm')
    k.finalize()
    return k

if __name__ == '__main__':
    k = gen_k2(stamp=True, opt=dict(verbose=1))
    print(k.stats(), k.maxregs())
    k = gen_red(); print(k.stats(), k.maxregs())
```

```python
MB = 1 << 20
WS_K = 0
WS_V = 16 * MB
WS_Q = 112 * MB
WS_A = 48 * MB
WS_H = 72 * MB
WS_X1 = 74 * MB
WS_G = 76 * MB
WS_ST = 77 * MB
WS_CS = 78 * MB
WS_FL = 79 * MB
WS_P = 80 * MB
WHS = 14 * 16384
WJ = 32 * MB - 16384
WS_OP = 144 * MB
ARG = dict(x=0, ckv=8, wq=16, wuk=24, wuv=32, wo=40, bx=48, w1=56, w2=64, w3=72, w4=80, gw=88, out=96, dbg=104, ws=112)
NC_F = 98
NO_F = 224
NU_F = 112
def stream_addr(f):
    h, r = f // 16, f % 16
    return ((h // 2 + 1) * 16384 if h % 2 == 0 else WS_V + (h // 2) * 16384) + r * 1024
```

```python
import sys
from common import *
import k1d, k2b
head = open('gated_mix__compressed_kv_cla__mixer_s_mlp__prompt.s.ref').read().split('; Override')[0]
def build(fn, o1={}, o2={}, stamp=None, upto=3):
    ks = [k1d.gen_k1(stamp=stamp == 1, opt=o1), k2b.gen_k2(stamp=stamp == 2, opt=o2), k2b.gen_red(stamp=stamp == 3)][:upto]
    L = [('proj_kernel', 256, 256, k1d.K1_LDS), ('attn_kernel', 256, 256, k2b.K2_LDS), ('red_kernel', 256, 448, 0)][:upto]
    s = write_file(fn, L, ks, head=head)
    print(fn, len(s), 'bytes')
if __name__ == '__main__':
    build('v3.s')
    build('v3_s2.s', stamp=2, upto=2)
    build('v3_s2p.s', stamp=2, upto=2, o2=dict(pstamp=1))
```

```python
import re

REG_RE = re.compile(r'^(-|neg\()?(abs\(|\|)?([vas])(\d+|\[(\d+):(\d+)\])[\)\|]*$')

def parse_reg(tok):
    t = tok.strip()
    if t in ('vcc',): return ['vcc_lo', 'vcc_hi']
    if t in ('vcc_lo', 'vcc_hi', 'm0', 'exec_lo', 'exec_hi'): return [t]
    if t == 'exec': return ['exec_lo', 'exec_hi']
    m = REG_RE.match(t)
    if not m: return []
    k = m.group(3)
    if m.group(5) is not None:
        return [f'{k}{i}' for i in range(int(m.group(5)), int(m.group(6)) + 1)]
    return [f'{k}{int(m.group(4))}']

TRANS = ('v_exp_f32', 'v_log_f32', 'v_rcp_f32', 'v_rsq_f32', 'v_sqrt_f32', 'v_sin_f32', 'v_cos_f32',
         'v_rcp_iflag_f32', 'v_exp_f16', 'v_rcp_f16')
DPP_RE = re.compile(r'\b(quad_perm|row_shl|row_shr|row_ror|wave_shl|wave_shr|wave_rol|wave_ror|row_mirror|row_half_mirror|row_bcast|row_newbcast)\b')

class Inst:
    __slots__ = ('text', 'op', 'dst', 'src', 'kind', 'passes', 'srcC', 'srcAB', 'cnt', 'tags', 'waits',
                 'target', 'is_label', 'name', 'dpp', 'trans', 'store_data', 'nstates', 'comment', 'opsel', 'rdlane', 'permlane', 'lds_dma', 'sgpr_vsrc')
    def __init__(self):
        self.text = ''; self.op = ''; self.dst = []; self.src = []; self.kind = ''
        self.passes = 0; self.srcC = []; self.srcAB = []; self.cnt = None; self.tags = []; self.waits = []
        self.target = None; self.is_label = False; self.name = None; self.dpp = False; self.trans = False
        self.store_data = []; self.nstates = 1; self.comment = ''; self.opsel = False
        self.rdlane = False; self.permlane = False; self.lds_dma = False

def split_ops(s):
    out = []; depth = 0; cur = ''
    for ch in s:
        if ch in '[(': depth += 1
        if ch in '])': depth -= 1
        if ch == ',' and depth == 0:
            out.append(cur.strip()); cur = ''
        else:
            cur += ch
    if cur.strip(): out.append(cur.strip())
    return out

def parse_inst(text):
    ins = Inst()
    ins.text = text
    t = text.strip()
    parts = t.split(None, 1)
    op = parts[0]
    rest = parts[1] if len(parts) > 1 else ''
    base = re.sub(r'_(e32|e64|dpp|sdwa)$', '', op)
    ins.op = base
    ops = split_ops(rest)
    mods = ''
    if ops:
        last = ops[-1].split(None, 1)
        ops[-1] = last[0]
        mods = last[1] if len(last) > 1 else ''
    R = [parse_reg(o) for o in ops]
    flat = lambda L: [r for x in L for r in x]
    if base.startswith('v_mfma'):
        ins.kind = 'mfma'
        ins.dst = R[0]; ins.srcAB = R[1] + R[2]; ins.srcC = R[3]; ins.src = ins.srcAB + ins.srcC
        if '32x32x16' in base and ('bf16' in base or 'f16' in base): ins.passes = 8
        elif '16x16x32' in base and ('bf16' in base or 'f16' in base): ins.passes = 4
        else: raise ValueError('unknown mfma ' + base)
    elif base.startswith('v_'):
        ins.kind = 'valu'
        ins.dpp = bool(DPP_RE.search(mods)) or op.endswith('_dpp')
        ins.trans = base in TRANS
        ins.opsel = ('op_sel' in mods and not base.startswith('v_pk_')) or 'dst_sel' in mods
        if base.startswith('v_cmpx'):
            ins.dst = R[0] + ['exec_lo', 'exec_hi']; ins.src = flat(R[1:])
        elif base.startswith('v_cmp'):
            ins.dst = R[0]; ins.src = flat(R[1:])
        elif base in ('v_readfirstlane_b32', 'v_readlane_b32'):
            ins.dst = R[0]; ins.src = flat(R[1:]); ins.rdlane = True
        elif base == 'v_writelane_b32':
            ins.dst = R[0]; ins.src = flat(R[1:]) + R[0]
        elif base.startswith('v_permlane'):
            ins.dst = R[0] + R[1]; ins.src = R[0] + R[1]; ins.permlane = True
        elif base in ('v_add_co_u32', 'v_sub_co_u32', 'v_subrev_co_u32', 'v_addc_co_u32', 'v_subb_co_u32', 'v_mad_u64_u32', 'v_div_scale_f32'):
            ins.dst = R[0] + R[1]; ins.src = flat(R[2:])
        elif base in ('v_fmac_f32', 'v_pk_fmac_f16', 'v_dot2c_f32_bf16', 'v_dot2c_f32_f16', 'v_fmac_f16'):
            ins.dst = R[0]; ins.src = flat(R[1:]) + R[0]
        elif base == 'v_nop':
            pass
        else:
            ins.dst = R[0]; ins.src = flat(R[1:])
            if ins.dpp or ins.opsel: ins.src = ins.src + R[0]
            if base == 'v_cndmask_b32' and len(ops) == 3: ins.src += ['vcc_lo', 'vcc_hi']
            if base == 'v_div_fmas_f32': ins.src += ['vcc_lo', 'vcc_hi']
    elif base.startswith('ds_'):
        ins.kind = 'ds'; ins.cnt = 'lgkm'
        if base.startswith('ds_read') or base.startswith('ds_bpermute') or base.startswith('ds_permute') or base.startswith('ds_swizzle') or '_rtn' in base:
            ins.dst = R[0]; ins.src = flat(R[1:])
        else:
            ins.src = flat(R)
    elif base.startswith('buffer_') or base.startswith('global_'):
        ins.kind = 'vmem'; ins.cnt = 'vm'
        allmods = ' ' + mods + ' '
        if base in ('buffer_wbl2', 'buffer_inv'):
            pass
        elif base.startswith('buffer_load') and ' lds ' in allmods:
            ins.src = flat(R) + ['m0']; ins.lds_dma = True
        elif base.startswith('global_load_lds'):
            ins.src = flat(R) + ['m0']; ins.lds_dma = True
        elif '_load' in base:
            ins.dst = R[0]; ins.src = flat(R[1:])
        elif 'atomic' in base:
            if ' sc0 ' in allmods:
                if base.startswith('buffer_'):
                    ins.dst = R[0]; ins.src = flat(R)
                else:
                    ins.dst = R[0]; ins.src = flat(R[1:])
            else:
                ins.src = flat(R)
        else:
            ins.src = flat(R)
            if base.endswith('x3') or base.endswith('x4'):
                ins.store_data = R[0] if base.startswith('buffer_') else R[1]
    elif base.startswith('s_load') or base.startswith('s_buffer_load') or base in ('s_memtime', 's_memrealtime'):
        ins.kind = 'smem'; ins.cnt = 'lgkm'
        ins.dst = R[0]; ins.src = flat(R[1:])
    elif base == 's_waitcnt':
        ins.kind = 'waitcnt'
    elif base == 's_nop':
        ins.kind = 'nop'; ins.nstates = int(ops[0], 0) + 1
    elif base in ('s_barrier', 's_setprio', 's_sleep', 's_endpgm', 's_sethalt', 's_setreg_imm32_b32', 's_ttracedata'):
        ins.kind = 'misc'
    elif base == 's_branch' or base.startswith('s_cbranch'):
        ins.kind = 'branch'; ins.target = ops[0]
        if 'vcc' in base: ins.src = ['vcc_lo', 'vcc_hi']
        if 'exec' in base: ins.src = ['exec_lo', 'exec_hi']
    elif base.startswith('s_cmp') or base.startswith('s_bitcmp'):
        ins.kind = 'salu'; ins.src = flat(R)
    elif base.startswith('s_'):
        ins.kind = 'salu'
        ins.dst = R[0]; ins.src = flat(R[1:])
        if 'saveexec' in base:
            ins.dst = ins.dst + ['exec_lo', 'exec_hi']; ins.src += ['exec_lo', 'exec_hi']
        if base in ('s_addk_i32', 's_mulk_i32', 's_cmov_b32', 's_cmov_b64', 's_cmovk_i32', 's_bitset0_b32', 's_bitset1_b32'): ins.src += R[0]
    else:
        raise ValueError('cannot classify: ' + text)
    return ins

WAIT_RE = re.compile(r'(vmcnt|lgkmcnt|expcnt)\((\d+)\)')
MAXC = {'vm': 63, 'lgkm': 15}

class Kernel:
    def __init__(self, name):
        self.name = name
        self.items = []
        self._lbl = 0
    def I(self, text, tag=None, comment=''):
        ins = parse_inst(text)
        if tag is not None:
            ins.tags = [tag] if isinstance(tag, str) else list(tag)
        ins.comment = comment
        self.items.append(ins)
        return ins
    def __call__(self, text, tag=None):
        for line in text.strip().split('\n'):
            line = line.split(';')[0].strip()
            if not line: continue
            if line.endswith(':'):
                self.label(line[:-1])
            else:
                self.I(line, tag=tag)
    def add(self, ins):
        self.items.append(ins)
    def label(self, name):
        ins = Inst(); ins.is_label = True; ins.name = name; ins.kind = 'label'; ins.nstates = 0
        self.items.append(ins)
    def newlabel(self, stem='L'):
        self._lbl += 1
        return f'{self.name}_{stem}{self._lbl}'
    def wait(self, *tags):
        ins = Inst(); ins.kind = 'waittag'; ins.waits = list(tags); ins.nstates = 0
        self.items.append(ins)
    def raw(self, text):
        ins = Inst(); ins.kind = 'raw'; ins.text = text; ins.nstates = 0
        self.items.append(ins)

    def _cfg(self, items):
        lab = {it.name: i for i, it in enumerate(items) if it.is_label}
        succ = [[] for _ in items]
        for i, it in enumerate(items):
            if it.kind == 'branch':
                succ[i].append(lab[it.target])
                if it.op != 's_branch' and i + 1 < len(items): succ[i].append(i + 1)
            elif it.op == 's_endpgm':
                pass
            elif i + 1 < len(items):
                succ[i].append(i + 1)
        pred = [[] for _ in items]
        for i, s in enumerate(succ):
            for j in s: pred[j].append(i)
        return succ, pred

    def insert_waits(self):
        items = self.items
        succ, pred = self._cfg(items)
        n = len(items)
        instate = [None] * n
        instate[0] = {}
        need = [None] * n
        work = [0]
        inwork = {0}
        def transfer(i, st):
            it = items[i]
            st = dict(st)
            req = {}
            def require(key, skip=None):
                for cc in ('vm', 'lgkm'):
                    kk = (key, cc)
                    if kk in st:
                        c, age, smem = st[kk]
                        if skip == c and not smem: continue
                        if c == 'lgkm' and any(v[2] for v in st.values()): age = 0
                        age = min(age, MAXC[c])
                        req[c] = min(req.get(c, 99), age)
            if it.kind == 'waittag':
                for t in it.waits: require('#' + t)
            elif it.kind == 'waitcnt':
                for m in WAIT_RE.finditer(it.text):
                    c = {'vmcnt': 'vm', 'lgkmcnt': 'lgkm'}.get(m.group(1))
                    if c is None: continue
                    N = int(m.group(2))
                    anysm = any(v[2] for v in st.values())
                    for k in list(st):
                        if st[k][0] == c and (st[k][1] >= N and not (c == 'lgkm' and anysm and N > 0)): del st[k]
            else:
                for r in it.src: require(r)
                for r in it.dst:
                    require(r, skip=it.cnt if it.kind != 'smem' else None)
            for c, N in req.items():
                for k in list(st):
                    if st[k][0] == c and st[k][1] >= N: del st[k]
            if it.cnt:
                for k in list(st):
                    if st[k][0] == it.cnt:
                        c, age, smem = st[k]
                        if age + 1 > 80 and not smem:
                            age = 79
                        st[k] = (c, age + 1, smem)
                for r in it.dst: st[(r, it.cnt)] = (it.cnt, 0, it.kind == 'smem')
                for t in it.tags: st[('#' + t, it.cnt)] = (it.cnt, 0, it.kind == 'smem')
            return st, req
        while work:
            i = work.pop(); inwork.discard(i)
            out, req = transfer(i, instate[i])
            need[i] = req
            for j in succ[i]:
                if instate[j] is None:
                    instate[j] = dict(out); changed = True
                else:
                    changed = False
                    cur = instate[j]
                    for k, v in out.items():
                        if k not in cur:
                            cur[k] = v; changed = True
                        else:
                            a = cur[k]
                            if a[0] != v[0]:
                                raise ValueError(f'reg {k} pending on two counters at item {j}: {items[j].text}')
                            if v[1] < a[1] or (v[2] and not a[2]):
                                cur[k] = (a[0], min(a[1], v[1]), a[2] or v[2]); changed = True
                if changed and j not in inwork:
                    work.append(j); inwork.add(j)
        new = []
        for i, it in enumerate(items):
            req = need[i]
            if req:
                s = 's_waitcnt'
                if 'vm' in req: s += f' vmcnt({req["vm"]})'
                if 'lgkm' in req: s += f' lgkmcnt({req["lgkm"]})'
                w = parse_inst(s); w.comment = 'auto'
                new.append(w)
            if it.kind != 'waittag': new.append(it)
        self.items = new

    def _hazard_need(self, prod, cons):
        need = 0
        pd = set(prod.dst)
        if prod.kind == 'valu':
            vd = {r for r in pd if r[0] in 'va' and r not in ('vcc_lo', 'vcc_hi')}
            sd = pd - vd
            if cons.kind == 'mfma':
                if vd & set(cons.src): need = max(need, 2)
                if sd & {'exec_lo', 'exec_hi'}: need = max(need, 4)
            if prod.op.startswith('v_dot') and cons.kind in ('valu', 'mfma', 'vmem', 'ds'):
                if vd & (set(cons.src) | set(cons.dst)):
                    same_c = cons.op == prod.op and not (vd & set(cons.src[:-len(cons.dst)] if cons.dst else cons.src))
                    if not same_c: need = max(need, 3)
            if cons.kind == 'valu':
                cs = set(cons.src)
                if prod.trans and not cons.trans and (vd & cs): need = max(need, 1)
                if prod.opsel and (vd & (cs | set(cons.dst))): need = max(need, 1)
                if cons.rdlane and (vd & cs): need = max(need, 1)
                if cons.permlane and (vd & cs): need = max(need, 2)
                if cons.dpp and (vd & cs): need = max(need, 2)
                if sd & cs:
                    need = max(need, 4 if (cons.op in ('v_readlane_b32', 'v_writelane_b32', 'v_div_fmas_f32')) else 2)
                if sd & {'exec_lo', 'exec_hi'}:
                    if cons.dpp: need = max(need, 5)
                    if cons.rdlane or cons.permlane or cons.op == 'v_writelane_b32': need = max(need, 4)
            if cons.kind == 'vmem' and (sd & set(cons.src)): need = max(need, 5)
            if cons.kind in ('salu', 'branch', 'smem') and (sd & set(cons.src)): need = max(need, 1)
            if cons.kind == 'branch' and (sd & set(cons.src)): need = max(need, 5)
        elif prod.kind == 'mfma':
            big = {8: 12, 4: 8}[prod.passes]
            part = {8: 10, 4: 6}[prod.passes]
            war = {8: 7, 4: 3}[prod.passes]
            if cons.kind == 'mfma':
                if pd & set(cons.srcAB): need = max(need, big)
                if pd & set(cons.srcC):
                    if not (cons.srcC == prod.dst and cons.passes == prod.passes): need = max(need, part)
                elif pd & set(cons.dst):
                    need = max(need, part)
            elif cons.kind in ('valu', 'ds', 'vmem'):
                if pd & (set(cons.src) | set(cons.dst)): need = max(need, big)
                if set(prod.srcC) & set(cons.dst): need = max(need, war)
        elif prod.kind == 'salu':
            if 'm0' in pd and cons.lds_dma: need = max(need, 1)
        elif prod.kind == 'vmem':
            if prod.store_data and (set(prod.store_data) & set(cons.dst)):
                need = max(need, 2 if cons.kind in ('valu', 'mfma') else 1)
        return need

    def insert_nops(self, maxdist=13):
        items = self.items
        succ, pred = self._cfg(items)
        extra = [0] * len(items)
        for i, cons in enumerate(items):
            if cons.kind in ('label', 'raw', 'nop', 'waitcnt', 'misc'): continue
            worst = 0
            stack = [(p, 0) for p in pred[i]]
            seen = {}
            while stack:
                j, dist = stack.pop()
                if seen.get(j, 99) <= dist: continue
                seen[j] = dist
                pr = items[j]
                if pr.kind in ('valu', 'mfma', 'salu', 'vmem'):
                    nd = self._hazard_need(pr, cons)
                    if nd - dist > worst: worst = nd - dist
                d2 = dist + pr.nstates + (extra[j] if j < i else 0)
                if d2 < maxdist:
                    for p in pred[j]: stack.append((p, d2))
            extra[i] = worst
        new = []
        for i, it in enumerate(items):
            k = extra[i]
            while k > 0:
                m = min(k, 16)
                w = parse_inst(f's_nop {m - 1}'); w.comment = 'hazard'
                new.append(w); k -= m
            new.append(it)
        self.items = new

    def finalize(self):
        self.insert_waits()
        self.insert_nops()

    def emit(self):
        out = []
        for it in self.items:
            if it.is_label: out.append(f'{it.name}:')
            elif it.kind == 'raw': out.append(it.text)
            else:
                out.append('  ' + it.text + (f' ; {it.comment}' if it.comment else ''))
        return '\n'.join(out)

    def maxregs(self):
        mv = ma = ms = -1
        for it in self.items:
            for r in list(it.dst) + list(it.src):
                if r[0] == 'v' and r[1:].isdigit(): mv = max(mv, int(r[1:]))
                elif r[0] == 'a' and r[1:].isdigit(): ma = max(ma, int(r[1:]))
                elif r[0] == 's' and r[1:].isdigit(): ms = max(ms, int(r[1:]))
        return mv + 1, ma + 1, ms + 1

    def stats(self):
        from collections import Counter
        return Counter(it.kind for it in self.items)


class Alloc:
    def __init__(self, kind, lo, hi):
        self.kind = kind; self.free = [True] * hi
        for i in range(lo): self.free[i] = False
        self.hi = hi
    def __call__(self, n=1, align=None):
        if align is None: align = 1 if n == 1 else (2 if n == 2 else 4)
        i = 0
        while i + n <= self.hi:
            if i % align == 0 and all(self.free[i:i + n]):
                for j in range(i, i + n): self.free[j] = False
                return Reg(self.kind, i, n)
            i += 1
        raise RuntimeError(f'out of {self.kind} registers for {n}')
    def release(self, *regs):
        for r in regs:
            for j in range(r.i, r.i + r.n): self.free[j] = True

class Reg:
    def __init__(self, kind, i, n=1):
        self.kind = kind; self.i = i; self.n = n
    def __str__(self):
        return f'{self.kind}{self.i}' if self.n == 1 else f'{self.kind}[{self.i}:{self.i + self.n - 1}]'
    __repr__ = __str__
    def __getitem__(self, k):
        if isinstance(k, slice):
            a = k.start or 0; b = k.stop if k.stop is not None else self.n
            return Reg(self.kind, self.i + a, b - a)
        assert 0 <= k < self.n, (k, self.n)
        return Reg(self.kind, self.i + k, 1)
    def sub(self, a, n):
        assert a + n <= self.n
        return Reg(self.kind, self.i + a, n)


def kernel_text(k, lds_static=0, force_vgpr=None):
    nv, na, ns = k.maxregs()
    acc = max(4, (nv + 3) // 4 * 4)
    nfv = acc + na if na > 0 else nv
    if force_vgpr: nfv = max(nfv, force_vgpr)
    body = f""".text
.globl {k.name}
.p2align 8
.type {k.name},@function
{k.name}:
{k.emit()}
"""
    desc = f""".section .rodata,"a"
.p2align 6
.amdhsa_kernel {k.name}
  .amdhsa_next_free_vgpr {nfv}
  .amdhsa_next_free_sgpr {max(ns, 16)}
  .amdhsa_accum_offset {acc}
  .amdhsa_group_segment_fixed_size 0
  .amdhsa_kernarg_size 120
  .amdhsa_user_sgpr_count 2
  .amdhsa_user_sgpr_kernarg_segment_ptr 1
  .amdhsa_system_sgpr_workgroup_id_x 1
  .amdhsa_float_denorm_mode_32 3
  .amdhsa_float_denorm_mode_16_64 3
.end_amdhsa_kernel
"""
    return body, desc

def interleave(main, fill, pattern=None):
    out = []
    n = len(main); m = len(fill)
    j = 0
    for i, x in enumerate(main):
        out.append(x)
        tgt = (m * (i + 1) + n - 1) // n if pattern is None else pattern(i)
        while j < min(tgt, m):
            out.append(fill[j]); j += 1
    out += fill[j:]
    return out
```

```python
from asmdsl import *
from layout import *

def srd(k, s, base, nbytes, add=None):
    if add is None:
        k(f's_mov_b32 s{s}, s{base}')
        k(f's_and_b32 s{s+1}, s{base+1}, 0xffff')
    else:
        k(f's_add_u32 s{s}, s{base}, {add}')
        k(f's_addc_u32 s{s+1}, s{base+1}, 0')
        k(f's_and_b32 s{s+1}, s{s+1}, 0xffff')
    k(f's_mov_b32 s{s+2}, {hex(nbytes)}')
    k(f's_mov_b32 s{s+3}, 0x20000')

def cost(text):
    op = text.split()[0]
    if op in TRANS: return 2
    return 1

def klass(text):
    op = text.split()[0]
    if op.startswith('s_'): return 's'
    if op.startswith('ds_') or op.startswith('buffer_') or op.startswith('global_'): return 'm'
    if op in TRANS: return 't'
    return 'v'

def pack(main, streams, v2=True):
    out = []
    pos = [0] * len(streams)
    nxt = [float(s.get('start', 0)) for s in streams]
    forced = 0
    prev_v2 = False
    for gi, m in enumerate(main):
        for si, s in enumerate(streams):
            n = s.get('by', {}).get(gi)
            while n is not None and pos[si] < min(n, len(s['items'])):
                it = s['items'][pos[si]]
                out += it if isinstance(it, list) else [it]
                pos[si] += 1; forced += 1
        out.append((m, None))
        for si, s in enumerate(streams): s['done'] = pos[si]
        S = []; M = []; Vv = []; Tt = []
        rank = [-1] * len(streams)
        def try_place(si, allowed):
            s = streams[si]
            if pos[si] >= len(s['items']): return False
            it = s['items'][pos[si]]
            grp = it if isinstance(it, list) else [it]
            c = klass(grp[0][0])
            assert len(grp) == 1 or all(klass(x[0]) == 's' for x in grp), grp
            if c not in allowed: return False
            st = s.get('stride', 0)
            if 'gate' in s and not s['gate'](gi, pos[si]): return False
            nvec = len(M) + len(Vv) + 2 * len(Tt)
            if c == 's':
                if gi < s.get('start', 0) - 1 or rank[si] > 0 or Tt: return False
                if len(S) + len(grp) + nvec > 3: return False
                S.extend(grp); rank[si] = 0
            else:
                if gi < int(nxt[si]): return False
                if 'gaps' in s and c in 'mt' and gi not in s['gaps']: return False
                if c == 'm':
                    if M or Tt or len(Vv) > 1 or rank[si] > 0 or len(S) + nvec + 1 > 3: return False
                    if rank[si] == 0 and any('m0' in x[0] for x in S): return False
                    M.extend(grp); rank[si] = 1
                elif c == 't':
                    if M or Vv or Tt or S: return False
                    Tt.extend(grp); rank[si] = 2
                else:
                    if Tt or nvec >= 2 or len(S) + nvec + 1 > 3: return False
                    if Vv and not v2: return False
                    Vv.extend(grp); rank[si] = 2
                if st: nxt[si] = max(max(nxt[si], gi - 0.5 if st % 1 else gi) + st, gi + 1)
            pos[si] += 1
            return True
        order = list(range(len(streams)))
        longest = sorted(order, key=lambda i: (0 if not streams[i].get('rr') else 1, -(len(streams[i]['items']) - pos[i]) if streams[i].get('rr') else i))
        for si in order: try_place(si, 'm')
        if not M:
            for si in longest:
                if try_place(si, 't'): break
        progress = True
        while progress:
            progress = False
            for si in order:
                if try_place(si, 'sm'): progress = True
        progress = True
        while progress:
            progress = False
            for si in longest:
                if try_place(si, 'v'): progress = True
        out += S + M + Vv + Tt
    left = []
    for si, s in enumerate(streams):
        if s.get('keep'):
            del s['items'][:pos[si]]
            continue
        for it in s['items'][pos[si]:]:
            left += it if isinstance(it, list) else [it]
    return out + left, len(left) + forced

def stamp_begin(k):
    k('s_memtime s[90:91]')
    k('s_memrealtime s[92:93]')

def stamp_at(k, n):
    k(f's_memtime s[{80 + 2 * n}:{81 + 2 * n}]')
    k('s_waitcnt lgkmcnt(0)')

def stamp_end(k, srd_s, t0, t1, base=100 * MB):
    k('s_waitcnt vmcnt(0)')
    k('s_memtime s[88:89]')
    k('s_memrealtime s[94:95]')
    k('s_waitcnt lgkmcnt(0)')
    k(f'v_lshrrev_b32 {t1}, 6, v0')
    k(f'v_lshlrev_b32 {t1}, 5, {t1}')
    k(f's_lshl_b32 s96, s2, 8')
    k(f's_add_u32 s96, s96, {hex(base)}')
    k(f'v_add_u32 {t1}, s96, {t1}')
    for i, sr in enumerate([80, 82, 84, 86, 88]):
        k(f's_sub_u32 s{sr}, s{sr}, s90')
        k(f'v_mov_b32 {t0}, s{sr}')
        k(f'buffer_store_dword {t0}, {t1}, s[{srd_s}:{srd_s + 3}], 0 offen offset:{i * 4}')
    for i, sr in enumerate([92, 94]):
        k(f'v_mov_b32 {t0}, s{sr}')
        k(f'buffer_store_dword {t0}, {t1}, s[{srd_s}:{srd_s + 3}], 0 offen offset:{20 + i * 4}')

HDR = '.amdgcn_target "amdgcn-amd-amdhsa--gfx950"\n'
def write_file(fn, launches, kernels, head=''):
    s = head
    for nm, g, b, lds in launches:
        s += f'; @launch kernel={nm} grid=({g},1,1) block=({b},1,1) lds={lds}\n'
    s += HDR
    bodies = []; descs = []
    for k in kernels:
        b, d = kernel_text(k)
        bodies.append(b); descs.append(d)
    s += ''.join(bodies) + ''.join(descs)
    open(fn, 'w').write(s)
    return s


def st_begin(k):
    k('s_memtime s[80:81]')
    k('s_memrealtime s[82:83]')
RT = [False]
def st_begin2(k):
    if RT[0]: k('s_mov_b32 s80, s82')
    k('s_mov_b32 s96, s80')
    for i in range(11): k(f's_mov_b32 s{84 + i}, s80')
def st_at(k, n):
    k('s_memrealtime s[80:81]' if RT[0] else 's_memtime s[80:81]')
    k('s_waitcnt lgkmcnt(0)')
    k(f's_mov_b32 s{84 + n}, s80')
def st_end(k, srd_s, t0, t1, base=100 * MB):
    k('s_waitcnt vmcnt(0)')
    st_at(k, 11)
    k('s_memrealtime s[80:81]')
    k('s_waitcnt lgkmcnt(0)')
    k(f'v_lshrrev_b32 {t1}, 6, v0')
    k(f'v_lshlrev_b32 {t1}, 6, {t1}')
    k(f's_lshl_b32 s81, s2, 8')
    k(f's_add_u32 s81, s81, {hex(base)}')
    k(f'v_add_u32 {t1}, s81, {t1}')
    for i in range(12):
        k(f's_sub_u32 s81, s{84 + i}, s96')
        k(f'v_mov_b32 {t0}, s81')
        k(f'buffer_store_dword {t0}, {t1}, s[{srd_s}:{srd_s + 3}], 0 offen offset:{i * 4}')
    for i, sr in enumerate([82, 80]):
        k(f'v_mov_b32 {t0}, s{sr}')
        k(f'buffer_store_dword {t0}, {t1}, s[{srd_s}:{srd_s + 3}], 0 offen offset:{48 + i * 4}')
```

```python
from common import *
from small import f2u, MF, LOG2E, GK0, GK1, xlane_sum, WSlab
import sys

BIAS = 40.0
PART_STRIDE = 72 * 1024
K2_LDS = 131072 + 28672

def gen_k2(name='attn_kernel', stamp=False, opt={}):
    UA = opt.get('UA', 34)
    k = Kernel(name)
    V = Alloc('v', 1, 128)
    O = lambda dt, qt: Reg('v', 128 + (dt * 2 + qt) * 4, 4)
    Qf = lambda qt, ds: Reg('a', (qt * 8 + ds) * 4, 4)
    Kf = lambda kt, ds: Reg('a', 64 + (kt * 8 + ds) * 4, 4)
    Vf = lambda dt: Reg('a', 128 + dt * 4, 4)
    ONES = Reg('a', 252, 4)
    lane = V(); l16 = V(); vdma = V()
    big = V(64, 4)
    S = [[[big.sub(((b * 2 + kt) * 2 + qt) * 4, 4) for qt in range(2)] for kt in range(2)] for b in range(2)]
    P = [[big.sub(32 + (b * 2 + qt) * 4, 4) for qt in range(2)] for b in range(2)]
    NM = [[big.sub(48 + (kt * 2 + qt) * 4, 4) for qt in range(2)] for kt in range(2)]
    OX = V(28, 4)
    L = [OX.sub(20, 4), OX.sub(24, 4)]
    E = V(8, 4); T = V(8, 4)
    ML = V(4)
    rp = V(); chk = V(); msk = V(); vF = V()
    t0 = V(); t1 = V(); t2 = V(); t3 = V()
    G2 = V(2);
    sw, shead, spair, styp = 's24', 's25', 's26', 's27'
    sK = ['s28', 's29']; sEnd, sJump, sD = 's30', 's31', 's32'
    sCnt, sPh, sIdle, sMode, sDiag, sNext, sPar, sPend = 's33', 's34', 's35', 's36', 's37', 's38', 's39', 's52'
    sQb, sU, sPo, sSp = 's53', 's54', 's62', 's63'
    def emit(lst):
        for it in lst:
            for x, tg in (it if isinstance(it, list) else [it]): k(x, tag=tg)

    k('s_cmp_ge_u32 s2, 256')
    k(f's_cbranch_scc1 {name}_end')
    k(f's_load_dwordx4 s[4:7], s[0:1], {ARG["dbg"]}')
    k(f's_load_dwordx2 s[58:59], s[0:1], {ARG["x"]}')
    k(f's_load_dwordx2 s[60:61], s[0:1], {ARG["w2"]}')
    if stamp: stamp_begin(k)
    k(f'v_and_b32 {lane}, 63, v0')
    k(f'v_lshrrev_b32 {t0}, 6, v0')
    k(f'v_readfirstlane_b32 {sw}, {t0}')
    k(f'v_lshlrev_b32 {l16}, 4, {lane}')
    k(f'v_lshl_add_u32 {vdma}, {t0}, 12, {l16}')
    k(f'v_mov_b32 {rp}, {l16}')
    k('s_and_b32 s40, s2, 7')
    k('s_lshr_b32 s41, s2, 3')
    k(f's_and_b32 {spair}, s41, 7')
    k(f's_bfe_u32 s42, s41, 0x10003')
    k(f's_lshl_b32 s40, s40, 1')
    k(f's_add_u32 {shead}, s40, s42')
    k(f's_lshr_b32 {styp}, s41, 4')
    k(f's_add_u32 s64, s40, {styp}')
    k(f's_and_b32 s65, s41, 15')
    VB = Alloc('v', big.i, big.i + 64)
    X = [[Reg('v', 128 + (rt * 14 + s) * 4, 4) for s in range(14)] for rt in range(2)]
    W = WSlab(k, VB, 32, 896, lane, sw, ldsbase=131072)
    XR = [VB(4), VB(4)]; WF = [[VB(4) for _ in range(2)] for _ in range(2)]; bacc = [[VB(4) for _ in range(2)] for _ in range(2)]
    va = [VB(), VB()]
    k(f'v_and_b32 {t0}, 15, {lane}')
    k(f's_lshl_b32 s40, {sw}, 5')
    k(f's_lshl_b32 s41, s64, 7')
    k(f's_add_u32 s40, s40, s41')
    k(f'v_add_u32 {t0}, s40, {t0}')
    k(f'v_mul_u32_u24 {va[0]}, 896, {t0}')
    k(f'v_lshrrev_b32 {t3}, 4, {lane}')
    k(f'v_lshl_add_u32 {va[0]}, {t3}, 4, {va[0]}')
    k(f'v_add_u32 {va[1]}, {16 * 896}, {va[0]}')
    k('s_lshl_b32 s66, s65, 6')
    W.setup_dma('s66', t0, t1, t2)
    dl = [-1, 1, -2, 2]
    vg = [[VB() for rt in range(2)] for _ in range(6)]
    for rt in range(2):
        for gi in range(4): k(f'v_add_u32 {vg[gi][rt]}, {hex((dl[gi] * 896) & 0xffffffff)}, {va[rt]}')
    k(f'v_cmp_gt_u32 vcc, 32, {lane}')
    for rt in range(2):
        k(f'v_cndmask_b32 {vg[4][rt]}, {vg[1][rt]}, {vg[0][rt]}, vcc')
        k(f'v_cndmask_b32 {vg[5][rt]}, {vg[3][rt]}, {vg[2][rt]}, vcc')
    k('s_waitcnt lgkmcnt(0)')
    srd(k, 16, 6, 256 * MB)
    lnb = k.newlabel('nob')
    k(f's_mov_b32 {sPend}, 0')
    k('s_cmp_ge_u32 s65, 14')
    k(f's_cbranch_scc1 {lnb}')
    srd(k, 68, 60, 448 * 896)
    srd(k, 72, 6, 2048 * 896, add=hex(WS_H))
    srd(k, 76, 58, 2048 * 896)
    W.dma(68, lambda i: 'w2')
    for s in range(14):
        gi = 4 if s == 3 else 5 if s == 10 else (4 * s) // 14
        for rt in range(2): k(f'buffer_load_dwordx4 {X[rt][s]}, {vg[gi][rt]}, s[72:75], 0 offen offset:{s * 64}')
    k(f'v_lshlrev_b32 {t0}, 3, {t3}')
    for rt in range(2):
        k(f'v_sub_u32 {va[rt]}, {va[rt]}, {t0}')
        for nt in range(2): k(f'buffer_load_dwordx2 {XR[rt].sub(2 * nt, 2)}, {va[rt]}, s[76:79], s66 offen offset:{nt * 32}')
    if opt.get('pstamp'): stamp_at(k, 0)
    W.setup_read(t0, t1, t2)
    k.label(lnb)
    la, lb7, ldone = k.newlabel('A'), k.newlabel('B7'), k.newlabel('segd')
    k(f's_sub_u32 {sQb}, 15, {spair}')
    k(f's_cmp_eq_u32 {styp}, 1')
    k(f's_cbranch_scc1 {la}')
    k(f's_cmp_eq_u32 {spair}, 7')
    k(f's_cbranch_scc1 {lb7}')
    k(f's_mov_b32 s55, {UA}')
    k(f's_lshl_b32 {sU}, {sQb}, 2')
    k(f's_sub_u32 {sU}, {sU}, {UA - 4}')
    k(f's_mov_b32 {sDiag}, 1'); k(f's_mov_b32 {sMode}, 1'); k(f's_mov_b32 {sNext}, 1'); k(f's_mov_b32 {sSp}, {(71 - UA) & 1}')
    k(f's_branch {ldone}')
    k.label(lb7)
    k(f's_mov_b32 {sQb}, 7'); k(f's_mov_b32 s55, 0'); k(f's_mov_b32 {sU}, 32')
    k(f's_mov_b32 {sDiag}, 1'); k(f's_mov_b32 {sMode}, 0'); k(f's_mov_b32 {sNext}, 0'); k(f's_mov_b32 {sSp}, 0')
    k(f's_branch {ldone}')
    k.label(la)
    k(f's_mov_b32 s55, 0'); k(f's_mov_b32 {sNext}, 0')
    k(f's_cmp_eq_u32 {spair}, 7')
    k(f's_cselect_b32 {sU}, 36, {UA}')
    k(f's_cselect_b32 {sDiag}, 1, 0')
    k(f's_cselect_b32 {sMode}, 0, 2')
    k(f's_and_b32 {sSp}, {sU}, 1')
    k.label(ldone)
    k(f's_add_u32 {sEnd}, s55, {sU}')
    k(f's_add_u32 {sEnd}, {sEnd}, {sNext}')
    k(f's_lshl_b32 {sEnd}, {sEnd}, 14')
    k(f's_cmp_eq_u32 {sNext}, 1')
    k(f's_cselect_b32 {sJump}, 0, {hex(WJ)}')
    k(f's_lshl_b32 s40, {shead}, 20')
    srd(k, 8, 6, WJ + 15 * 16384, add='s40')
    k(f's_add_u32 s40, s40, {hex(WS_V)}')
    srd(k, 12, 6, WJ + 14 * 16384, add='s40')
    srd(k, 20, 6, 256 * 128, add=hex(WS_FL))

    def kdma(sreg): return [(f'buffer_load_dwordx4 {vdma}, s[8:11], {sreg} offen offset:{i * 1024} lds', None) for i in range(4)]
    def vdma_(sreg): return [(f'buffer_load_dwordx4 {vdma}, s[12:15], {sreg} offen offset:{i * 1024} lds', None) for i in range(4)]
    def qloads(qbreg, tmp=('s40', 's41')):
        a, b = tmp
        Lq = [[(f's_lshl_b32 {a}, {shead}, 20', None), (f's_lshl_b32 {b}, {qbreg}, 16', None)], [(f's_add_u32 {a}, {a}, {b}', None), (f's_lshl_b32 {b}, {sw}, 14', None)],
              [(f's_add_u32 {a}, {a}, {b}', None), (f's_add_u32 {a}, {a}, {hex(WS_Q)}', None)]]
        for n in range(16):
            if n and n % 4 == 0: Lq.append([(f's_add_u32 {a}, {a}, 0x1000', None)])
            Lq.append((f'buffer_load_dwordx4 {Qf(n // 8, n % 8)}, {l16}, s[16:19], {a} offen offset:{(n % 4) * 1024}', None))
        return Lq
    k(f's_lshl_b32 {sD}, {sw}, 12')
    k(f's_lshl_b32 s42, {sSp}, 15'); k(f's_add_u32 s42, s42, {sD}')
    k(f's_lshl_b32 s43, s55, 14'); k('s_add_u32 s56, s43, 0x4000'); k('s_add_u32 s57, s43, 0x8000')
    k(f's_cmp_eq_u32 {sSp}, 0')
    k(f's_cselect_b32 {sK[1]}, s56, s57'); k(f's_cselect_b32 {sK[0]}, s57, s56')
    k(f's_cselect_b32 s40, 0x10000, 0'); k(f's_add_u32 {sD}, {sD}, s40')
    init = [[('s_mov_b32 m0, s42', None)]] + kdma('s43') + qloads(sQb) + [[('s_add_u32 m0, s42, 0x8000', None)]] + kdma('s56')
    init += [[('s_add_u32 m0, s42, 0x14000', None)]] + vdma_('s43') + [[('s_add_u32 m0, s42, 0x10000', None)]] + kdma('s57')
    lnb2, lb_done = k.newlabel('nob'), k.newlabel('bd')
    k('s_cmp_ge_u32 s65, 14')
    k(f's_cbranch_scc1 {lnb2}')
    k.wait('w2'); k('s_barrier')
    if opt.get('pstamp'): stamp_at(k, 1)
    ist = dict(items=list(init), keep=True, stride=2)
    rdb = lambda s: [x for nt in range(2) for x in W.reads(s, nt, WF[s % 2][nt])]
    emit(rdb(0))
    for s in range(14):
        if s + 1 < 14: emit(rdb(s + 1))
        M = [f'{MF} {bacc[rt][nt]}, {WF[s % 2][nt]}, {X[rt][s]}, {"0" if s == 0 else bacc[rt][nt]}' for nt in range(2) for rt in range(2)]
        lst, _ = pack(M, [ist]); emit(lst)
    emit(ist['items'])
    if opt.get('pstamp'): stamp_at(k, 2)
    st4 = T.sub(4, 4)
    k(f'v_mov_b32 {t3}, 0x3f803f80')
    for j in range(4): k(f'v_mov_b32 {st4[j]}, 0')
    k(f's_lshl_b32 s40, s64, 3'); k(f's_lshl_b32 s41, {sw}, 1'); k('s_add_u32 s40, s40, s41')
    k(f's_mul_i32 s41, s40, 14'); k('s_add_u32 s41, s41, s65'); k('s_lshl_b32 s41, s41, 10')
    k(f's_add_u32 s41, s41, {hex(WS_X1)}')
    for rt in range(2):
        for nt in range(2):
            a = bacc[rt][nt]
            k(f'v_cvt_pk_bf16_f32 {T[0]}, {a[0]}, {a[1]}')
            k(f'v_cvt_pk_bf16_f32 {T[1]}, {a[2]}, {a[3]}')
            for h in range(2):
                xr = XR[rt][2 * nt + h]
                k(f'v_lshlrev_b32 {a[2 * h]}, 16, {T[h]}')
                k(f'v_and_b32 {a[2 * h + 1]}, 0xffff0000, {T[h]}')
                k(f'v_lshlrev_b32 {T[2]}, 16, {xr}')
                k(f'v_and_b32 {T[3]}, 0xffff0000, {xr}')
                k(f'v_pk_add_f32 {a.sub(2 * h, 2)}, {a.sub(2 * h, 2)}, {T.sub(2, 2)}')
                k(f'v_cvt_pk_bf16_f32 {xr}, {a[2 * h]}, {a[2 * h + 1]}')
        if rt: k(f's_add_u32 s41, s41, {14 * 1024}')
        k(f'buffer_store_dwordx4 {XR[rt]}, {l16}, s[16:19], s41 offen sc1')
        for j in range(4):
            k(f'v_dot2c_f32_bf16 {st4[2 * rt]}, {XR[rt][j]}, {t3}')
            k(f'v_dot2c_f32_bf16 {st4[2 * rt + 1]}, {XR[rt][j]}, {XR[rt][j]}')
    xlane_sum(k, [st4[j] for j in range(4)], [T[j] for j in range(4)])
    k(f's_lshl_b32 s40, s40, 3'); k('s_add_u32 s40, s40, s65'); k('s_lshl_b32 s40, s40, 8')
    k(f's_add_u32 s40, s40, {hex(WS_ST)}')
    k('s_mov_b64 exec, 0xffff')
    k(f'buffer_store_dwordx4 {st4}, {l16}, s[16:19], s40 offen sc1')
    k('s_mov_b64 exec, -1')
    k(f's_mov_b32 {sPend}, 1')
    k(f's_lshl_b32 {sPo}, s64, 7')
    k(f's_branch {lb_done}')
    k.label(lnb2)
    emit(init)
    k.label(lb_done)
    k(f'v_mov_b32 {t0}, 0x3f803f80')
    for j in range(4): k(f'v_accvgpr_write_b32 {ONES[j]}, {t0}')
    k(f'v_mov_b32 {msk}, 0x40004000')
    k(f'v_lshrrev_b32 {t0}, 4, {lane}')
    k(f'v_lshlrev_b32 {t0}, 2, {t0}')
    k(f'v_and_b32 {t1}, 15, {lane}')
    for r in range(4):
        k(f'v_add_u32 {t2}, {r}, {t0}')
        k(f'v_cmp_le_u32 s[{44 + 2 * r}:{45 + 2 * r}], {t2}, {t1}')
    def zero_state():
        for i in range(0, 128, 2): k(f'v_mov_b64 v[{128 + i}:{129 + i}], 0')
        for qt in range(2):
            for j in (0, 2): k(f'v_mov_b64 {L[qt].sub(j, 2)}, 0')
        for kt in range(2):
            for qt in range(2):
                for j in (0, 2): k(f'v_mov_b64 {NM[kt][qt].sub(j, 2)}, 0')
        k(f'v_mov_b32 {ML[0]}, 0'); k(f'v_mov_b32 {ML[2]}, 0')
    def seg_counts():
        k(f's_sub_u32 {sIdle}, 3, {sw}')
        k(f's_mul_i32 {sIdle}, {sIdle}, {sDiag}')
        k(f's_sub_u32 {sCnt}, {sU}, {sIdle}')
        k(f's_sub_u32 {sCnt}, {sCnt}, 1')
    def apply_mask():
        k(f'v_mov_b32 {t0}, {hex(f2u(-1e30))}')
        for r in range(4):
            for q in range(2):
                k(f'v_cndmask_b32 {NM[q][q][r]}, {t0}, {NM[q][q][r]}, s[{44 + 2 * r}:{45 + 2 * r}]')
            k(f'v_mov_b32 {NM[1][0][r]}, {t0}')
    zero_state()
    seg_counts()

    def sync(first=False):
        k(f's_waitcnt vmcnt({28 if first else 16}) lgkmcnt(0)')
        k('s_barrier')
    def dma_items(par):
        r = sK[(par + 1) % 2]; o = sK[par]
        base = 0x8000 if par == 0 else 0
        it = [[(f's_add_u32 m0, {sD}, {hex(base + 0x4000)}', None)]]
        it += vdma_(r)
        it.append([(f's_add_u32 {r}, {o}, 0x4000', None)])
        it.append([(f's_cmp_eq_u32 {r}, {sEnd}', None), (f's_cselect_b32 {r}, {sJump}, {r}', None)])
        it.append([(f's_add_u32 m0, {sD}, {hex(base)}' if base else f's_mov_b32 m0, {sD}', None)])
        it += kdma(r)
        if par == 0: it.append([(f's_xor_b32 {sD}, {sD}, 0x10000', None)])
        return it
    def kreads(par, n=16): return [(f'ds_read_b128 {Kf(i // 8, i % 8)}, {rp} offset:{par * 32768 + i * 1024}', None) for i in range(n)]
    def vreads(par, n=16): return [(f'ds_read_b128 {Vf(i)}, {rp} offset:{par * 32768 + 16384 + i * 1024}', None) for i in range(n)]
    def rp_toggle(par): return [(f'v_xor_b32 {rp}, 0x10000, {rp}', None)] if par == 1 else []
    def g1(b):
        Lm = []
        for kt in range(2):
            for ds in range(8):
                for qt in range(2):
                    c = NM[kt][qt] if ds == 0 else S[b][kt][qt]
                    Lm.append(f'{MF} {S[b][kt][qt]}, {Kf(kt, ds)}, {Qf(qt, ds)}, {c}')
        return Lm
    def g2(b):
        Lm = []
        for dt in range(16):
            for qt in range(2):
                Lm.append(f'{MF} {O(dt, qt)}, {Vf(dt)}, {P[b][qt]}, {O(dt, qt)}')
        for qt in range(2):
            Lm.append(f'{MF} {L[qt]}, {ONES}, {P[b][qt]}, {L[qt]}')
        return Lm
    def softmax(b):
        G = []
        n = 0
        for kt in range(2):
            for qt in range(2):
                for h in range(2):
                    e0 = E[(2 * n) % 8]; e1 = E[(2 * n + 1) % 8]; n += 1
                    G.append([(f'v_exp_f32 {e0}, {S[b][kt][qt][2 * h]}', None), (f'v_exp_f32 {e1}, {S[b][kt][qt][2 * h + 1]}', None),
                              (f'v_cvt_pk_bf16_f32 {P[b][qt][kt * 2 + h]}, {e0}, {e1}', None)])
        return G
    NP1 = opt.get('np1', 5)
    def sm_flat(G):
        out = []
        for i, g in enumerate(G): out += g
        return out
    def sm_pipe(G):
        out = []
        for i, g in enumerate(G):
            out += g[:2]
            if i > 0: out.append(G[i - 1][2])
        if G: out.append(G[-1][2])
        return out
    def check(b):
        p = [P[b][0][j] for j in range(4)] + [P[b][1][j] for j in range(4)]
        return [(f'v_or3_b32 {chk}, {p[0]}, {p[1]}, {p[4]}', None), (f'v_or3_b32 {chk}, {chk}, {p[5]}, {p[2]}', None),
                (f'v_or3_b32 {chk}, {chk}, {p[3]}, {p[6]}', None), (f'v_bitop3_b32 {chk}, {chk}, {p[7]}, {msk} bitop3:0xa8', None),
                (f'v_cmp_ne_u32 vcc, 0, {chk}', None)]
    def rowmax_delta(b, init):
        for qt, d in ((0, t2), (1, t3)):
            a = S[b][0][qt]; c = S[b][1][qt]
            k(f'v_max3_f32 {d}, {a[0]}, {a[1]}, {a[2]}')
            k(f'v_max3_f32 {d}, {d}, {a[3]}, {c[0]}')
            k(f'v_max3_f32 {d}, {d}, {c[1]}, {c[2]}')
            k(f'v_max_f32 {d}, {d}, {c[3]}')
        for op in ('v_permlane32_swap_b32', 'v_permlane16_swap_b32'):
            k(f'v_mov_b32 {t0}, {t2}'); k(f'v_mov_b32 {t1}, {t3}')
            k(f'{op} {t2}, {t0}'); k(f'{op} {t3}, {t1}')
            k(f'v_max_f32 {t2}, {t2}, {t0}'); k(f'v_max_f32 {t3}, {t3}, {t1}')
        for d in (t2, t3):
            k(f'v_add_f32 {d}, {hex(f2u(BIAS))}, {d}')
            if not init: k(f'v_max_f32 {d}, 0, {d}')
    def sub_delta(regs2):
        for kt in range(2):
            for qt, d in ((0, t2), (1, t3)):
                for j in range(4): k(f'v_sub_f32 {regs2[kt][qt][j]}, {regs2[kt][qt][j]}, {d}')
    def rescale(b, other_live, ret):
        rowmax_delta(b, False)
        sub_delta(S[b])
        if other_live: sub_delta(S[1 - b])
        sub_delta(NM)
        k(f'v_sub_f32 {ML[0]}, {ML[0]}, {t2}'); k(f'v_sub_f32 {ML[2]}, {ML[2]}, {t3}')
        k(f'v_exp_f32 {t2}, -{t2}'); k(f'v_exp_f32 {t3}, -{t3}')
        for dt in range(16):
            for qt, d in ((0, t2), (1, t3)):
                for j in range(4): k(f'v_mul_f32 {O(dt, qt)[j]}, {O(dt, qt)[j]}, {d}')
        for qt, d in ((0, t2), (1, t3)):
            for j in range(4): k(f'v_mul_f32 {L[qt][j]}, {L[qt][j]}, {d}')
        emit(sm_pipe(softmax(b)))
        k(f's_branch {ret}')
    lab = lambda s, par: f'{name}_{s}{par}'
    def flag_load():
        k(f's_lshl_b32 s40, {shead}, 3'); k(f's_add_u32 s40, s40, {spair}'); k('s_add_u32 s40, s40, 16'); k('s_lshl_b32 s40, s40, 7')
        k(f'v_mov_b32 {t0}, s40')
        k(f's_lshl_b32 s40, {sQb}, 7')
        k(f'v_writelane_b32 {t0}, s40, 0')
        k(f'buffer_load_dword {vF}, {t0}, s[20:23], 0 offen sc1')

    if opt.get('pstamp'): stamp_at(k, 3)
    sync(first=True)
    if stamp and not opt.get('xs'): stamp_at(k, 0)
    k(f's_cmp_eq_u32 {sSp}, 1')
    k(f's_cbranch_scc1 {lab("pre", 1)}')
    for par in range(2):
        k.label(lab('pre', par))
        emit(kreads(par)); emit(rp_toggle(par)); emit(dma_items(par))
        k(f's_branch {lab("P", 1 - par)}')

    for par in range(2):
        k.label(lab('P', par))
        k(f's_cmp_lg_u32 {sCnt}, 0')
        lskip = k.newlabel('nm')
        k(f's_cbranch_scc1 {lskip}')
        apply_mask()
        flag_load()
        k.label(lskip)
        sync()
        lst, _ = pack(g1(par), [dict(items=dma_items(par), stride=3)])
        emit(lst)
        emit(kreads(par)); emit(rp_toggle(par))
        rowmax_delta(par, True)
        sub_delta(S[par]); sub_delta(NM)
        k(f'v_sub_f32 {ML[0]}, {ML[0]}, {t2}'); k(f'v_sub_f32 {ML[2]}, {ML[2]}, {t3}')
        emit(sm_pipe(softmax(par)[:NP1]))
        lnp = k.newlabel('np')
        k(f's_cmp_eq_u32 {sPend}, 0')
        k(f's_cbranch_scc1 {lnp}')
        k('s_waitcnt vmcnt(0)')
        k(f'v_mov_b32 {t0}, {sPend}')
        k('s_mov_b64 exec, 1')
        k(f'buffer_atomic_add {t0}, off, s[20:23], {sPo} sc1')
        k('s_mov_b64 exec, -1')
        k(f's_mov_b32 {sPend}, 0')
        k.label(lnp)
        if opt.get('mstamp'): stamp_at(k, 0)
        k(f's_cmp_eq_u32 {sCnt}, 0')
        k(f's_cbranch_scc1 {lab("T", 1 - par)}')
        k(f's_mov_b32 {sPh}, 0')
        k(f's_sub_u32 {sCnt}, {sCnt}, 2')
        k(f's_cbranch_scc1 {lab("H", 1 - par)}')
        k(f's_branch {lab("M", 1 - par)}')

    for par in range(2):
        k.label(lab('H', par))
        k(f's_cmp_eq_u32 {sPh}, 1')
        k(f's_cbranch_scc1 {lab("T", par)}')
        k(f's_mov_b32 {sPh}, 1')
        k(f's_mov_b32 {sCnt}, 0')
        if opt.get('mstamp'): stamp_at(k, 1)
        flag_load()
        k(f's_cmp_eq_u32 {sDiag}, 0')
        k(f's_cbranch_scc1 {lab("M", par)}')
        apply_mask()
        k(f's_branch {lab("M", par)}')

    k.raw('.p2align 6')
    for par in range(2):
        k.label(lab('M', par))
        sync()
        dm = dma_items(par)
        sm2 = sm_flat(softmax(1 - par)[NP1:]) + check(1 - par)
        lst, left = pack(g1(par), [dict(items=dm[:8], start=2, stride=opt.get('ds1', 7)), dict(items=vreads(par), stride=opt.get('rs', 1.5)), dict(items=sm2)])
        assert left == 0, left
        emit(lst)
        k('s_waitcnt lgkmcnt(0)')
        k(f's_cbranch_vccnz {lab("R", par)}')
        k.label(lab('Rr', par))
        lst, left = pack(g2(1 - par), [dict(items=dm[8:], start=2, stride=opt.get('ds2', 8)), dict(items=kreads(par) + rp_toggle(par), stride=opt.get('rs2', 1.5)), dict(items=sm_flat(softmax(par)[:NP1]), start=1)])
        assert left == 0, left
        emit(lst)
        k(f's_sub_u32 {sCnt}, {sCnt}, 1')
        k(f's_cbranch_scc1 {lab("H", 1 - par)}')
        if par == 1: k(f's_branch {lab("M", 0)}')

    for par in range(2):
        k.label(lab('R', par))
        rescale(1 - par, True, lab('Rr', par))
        k.label(lab('RT', par))
        rescale(1 - par, False, lab('RTr', par))

    X1 = lambda qt, ks: Reg('a', (ks * 2 + qt) * 4 if ks < 8 else 192 + ((ks - 8) * 2 + qt) * 4, 4)
    SPT = OX.sub(0, 16)
    PML = OX.sub(16, 4)
    def part_base():
        k(f's_lshl_b32 s40, {shead}, 3')
        k(f's_add_u32 s40, s40, {spair}')
        k(f's_mul_i32 s42, s40, {PART_STRIDE}')
        k(f's_add_u32 s42, s42, {hex(WS_P)}')
        k(f's_lshl_b32 s41, {sw}, 14')
        k(f's_add_u32 s43, s42, s41')
        k(f's_lshl_b32 s41, {sw}, 10')
        k(f's_add_u32 s42, s42, s41')
        k(f's_add_u32 s42, s42, 0x10000')
    PZ = [big.sub(4 * n, 4) for n in range(8)] + [big.sub(40 + 4 * n, 4) for n in range(6)] + [T.sub(0, 4), T.sub(4, 4)]
    for par in range(2):
        k.label(lab('T', par))
        if opt.get('mstamp'): stamp_at(k, 2)
        lq, lfin, lgo, lpoll = k.newlabel('nq'), k.newlabel('tf'), k.newlabel('go'), k.newlabel('poll')
        k(f's_cmp_eq_u32 {sNext}, 0')
        k(f's_cbranch_scc1 {lfin}')
        sync()
        emit(vreads(par))
        emit(qloads(spair))
        k(f's_branch {lq}')
        k.label(lfin)
        k('s_mov_b32 s57, 0')
        k.label(lpoll)
        k(f'v_readlane_b32 s56, {vF}, 1')
        k(f'v_readlane_b32 s43, {vF}, 0')
        k(f's_cmp_eq_u32 {sMode}, 2'); k('s_cselect_b32 s56, s56, 4')
        k('s_add_u32 s56, s56, s43')
        k('s_cmp_eq_u32 s56, 60')
        k(f's_cbranch_scc1 {lgo}')
        k('s_sleep 4')
        flag_load()
        k('s_add_u32 s57, s57, 1')
        k('s_cmp_lt_u32 s57, 0x40000')
        k(f's_cbranch_scc1 {lpoll}')
        k.label(lgo)
        sync()
        emit(vreads(par))
        k(f's_lshl_b32 s56, {sQb}, 3'); k(f's_lshl_b32 s41, {sw}, 1'); k('s_add_u32 s56, s56, s41')
        k('s_lshl_b32 s40, s56, 11'); k(f's_add_u32 s40, s40, {hex(WS_ST)}')
        for i in range(4): k(f'buffer_load_dwordx4 {SPT.sub(4 * i, 4)}, {l16}, s[16:19], s40 offen offset:{i * 1024} sc1')
        k(f'v_and_b32 {t0}, 15, {lane}'); k(f'v_lshlrev_b32 {t0}, 2, {t0}')
        k('s_lshl_b32 s40, s56, 6'); k(f's_add_u32 s40, s40, {hex(WS_G)}')
        for qt in range(2): k(f'buffer_load_dword {G2[qt]}, {t0}, s[16:19], s40 offen offset:{qt * 64}')
        if par == 1:
            lnm = k.newlabel('nm')
            k(f's_cmp_lg_u32 {sMode}, 2'); k(f's_cbranch_scc1 {lnm}')
            part_base()
            k(f'buffer_load_dwordx4 {PML}, {l16}, s[16:19], s42 offen sc1')
            k.label(lnm)
        k.label(lq)
        emit(sm_pipe(softmax(1 - par)[NP1:]) + check(1 - par))
        k(f's_cbranch_vccnz {lab("RT", par)}')
        k.label(lab('RTr', par))
        lx, lx2 = k.newlabel('nx'), k.newlabel('nx')
        k(f's_cmp_lg_u32 {sNext}, 0'); k(f's_cbranch_scc1 {lx}')
        if par == 1:
            k(f's_cmp_lg_u32 {sMode}, 2'); k(f's_cbranch_scc1 {lx2}')
            for n in range(16):
                if n % 4 == 0: k(f's_add_u32 s41, s43, {hex(n * 1024)}')
                k(f'buffer_load_dwordx4 {PZ[n]}, {l16}, s[16:19], s41 offen offset:{(n % 4) * 1024} sc1')
            k.label(lx2)
        k(f's_mul_i32 s66, s56, {14 * 1024}'); k(f's_add_u32 s66, s66, {hex(WS_X1)}')
        k(f's_add_u32 s67, s66, {14 * 1024}')
        xl = []
        for ks in range(14):
            if ks and ks % 4 == 0: xl.append([('s_add_u32 s66, s66, 0x1000', None), ('s_add_u32 s67, s67, 0x1000', None)])
            for qt in range(2): xl.append((f'buffer_load_dwordx4 {X1(qt, ks)}, {l16}, s[16:19], s{66 + qt} offen offset:{(ks % 4) * 1024} sc1', None))
        lst, left = pack(g2(1 - par), [dict(items=dma_items(par) + xl, stride=2), dict(items=kreads(par) + rp_toggle(par), start=1)])
        emit(lst)
        k(f's_branch {lab("I", 1 - par)}')
        k.label(lx)
        lst, left = pack(g2(1 - par), [dict(items=dma_items(par), stride=3), dict(items=kreads(par) + rp_toggle(par), start=4)])
        emit(lst)
        k(f's_branch {lab("I", 1 - par)}')
    for par in range(2):
        k.label(lab('I', par))
        k(f's_mov_b32 {sPar}, {par}')
        k(f's_sub_u32 {sIdle}, {sIdle}, 1')
        k(f's_cbranch_scc1 {name}_epi')
        sync()
        emit(kreads(par)); emit(rp_toggle(par)); emit(dma_items(par))
        if par == 1: k(f's_branch {lab("I", 0)}')

    k.label(f'{name}_epi')
    lfinal = k.newlabel('final')
    k(f's_cmp_eq_u32 {sNext}, 0')
    k(f's_cbranch_scc1 {lfinal}')
    part_base()
    sc = [T.sub(0, 2), T.sub(2, 2)]
    for qt in range(2): k(f'v_rcp_f32 {sc[qt][0]}, {L[qt][0]}')
    for qt in range(2): k(f'v_mov_b32 {sc[qt][1]}, {sc[qt][0]}')
    n = 0
    for qt in range(2):
        for u in range(8):
            pk_ = big.sub((n % 8) * 4, 4); n += 1
            for d in (2 * u, 2 * u + 1):
                for j in (0, 2): k(f'v_pk_mul_f32 {O(d, qt).sub(j, 2)}, {O(d, qt).sub(j, 2)}, {sc[qt]}')
            for j in range(4):
                o = O(2 * u + j // 2, qt)
                k(f'v_cvt_pk_bf16_f32 {pk_[j]}, {o[(j % 2) * 2]}, {o[(j % 2) * 2 + 1]}')
            if u % 4 == 0: k(f's_add_u32 s41, s43, {hex(qt * 8192 + u * 1024)}')
            k(f'buffer_store_dwordx4 {pk_}, {l16}, s[16:19], s41 offen offset:{(u % 4) * 1024} sc1')
    k(f'v_mov_b32 {ML[1]}, {L[0][0]}'); k(f'v_mov_b32 {ML[3]}, {L[1][0]}')
    k(f'buffer_store_dwordx4 {ML}, {l16}, s[16:19], s42 offen sc1')
    k(f's_mov_b32 {sPend}, 1')
    k(f's_add_u32 {sPo}, s40, 16'); k(f's_lshl_b32 {sPo}, {sPo}, 7')
    k(f's_mov_b32 {sQb}, {spair}')
    k(f's_lshl_b32 {sU}, {spair}, 2'); k(f's_add_u32 {sU}, {sU}, 4')
    k(f's_mov_b32 {sMode}, 0'); k(f's_mov_b32 {sNext}, 0')
    k(f's_lshl_b32 {sEnd}, {sU}, 14')
    k(f's_mov_b32 {sJump}, {hex(WJ)}')
    zero_state()
    seg_counts()
    k(f's_cmp_eq_u32 {sPar}, 0')
    k(f's_cbranch_scc1 {lab("P", 0)}')
    k(f's_branch {lab("P", 1)}')

    k.label(lfinal)
    if opt.get('mstamp'): stamp_at(k, 3)
    if opt.get('tstamp'): stamp_at(k, 0)
    if stamp and not opt.get('xs'): stamp_at(k, 1)
    k(f'v_cmp_gt_u32 vcc, 32, {lane}')
    for j in range(4): k(f'v_cndmask_b32 {SPT[12 + j]}, 0, {SPT[12 + j]}, vcc')
    for j in (0, 2):
        k(f'v_pk_add_f32 {SPT.sub(j, 2)}, {SPT.sub(j, 2)}, {SPT.sub(4 + j, 2)}')
        k(f'v_pk_add_f32 {SPT.sub(8 + j, 2)}, {SPT.sub(8 + j, 2)}, {SPT.sub(12 + j, 2)}')
        k(f'v_pk_add_f32 {SPT.sub(j, 2)}, {SPT.sub(j, 2)}, {SPT.sub(8 + j, 2)}')
    xlane_sum(k, [SPT[j] for j in range(4)], [SPT[4 + j] for j in range(4)])
    k(f's_mov_b32 s40, {hex(f2u(1.0 / 448))}')
    C0 = [chk, msk]; C1 = [ML[1], ML[3]]; CQ = [vF, lane]
    NMU = [E.sub(0, 2), E.sub(2, 2)]
    k(f'v_lshrrev_b32 {t3}, 4, {lane}')
    k(f'v_lshlrev_b32 {t3}, 4, {t3}')
    for qt in range(2):
        mu = NMU[qt][0]
        k(f'v_mul_f32 {mu}, s40, {SPT[2 * qt]}')
        k(f'v_mul_f32 {t0}, {mu}, {mu}')
        k(f'v_fma_f32 {t0}, {SPT[2 * qt + 1]}, s40, -{t0}')
        k(f'v_max_f32 {t0}, 0, {t0}')
        k(f'v_add_f32 {t0}, {hex(f2u(1e-5))}, {t0}')
        k(f'v_rsq_f32 {t0}, {t0}')
        k(f'v_sub_f32 {mu}, 0, {mu}')
        k(f'v_mov_b32 {NMU[qt][1]}, {mu}')
        k(f'v_mul_f32 {C0[qt]}, {hex(f2u(GK0))}, {t0}')
        k(f'v_mul_f32 {t1}, {t0}, {t0}')
        k(f'v_mul_f32 {t1}, {t1}, {t0}')
        k(f'v_mul_f32 {C1[qt]}, {hex(f2u(GK1))}, {t1}')
        k(f'v_sub_f32 {t1}, 1.0, {G2[qt]}')
        k(f'v_mul_f32 {t1}, {t1}, {t0}')
        k(f'v_rcp_f32 {t1}, {t1}')
        k(f'v_min_f32 {CQ[qt]}, {hex(f2u(1e30))}, {t1}')
    al = [E.sub(4, 2), E.sub(6, 2)]; be = [PML.sub(0, 2), PML.sub(2, 2)]
    lm, lpk = k.newlabel('merge'), k.newlabel('pack')
    CSZ = [OX.sub(4 * n, 4) for n in range(4)] + [L[0], L[1], big.sub(32, 4)]
    def cs_loads():
        k(f's_mul_i32 s40, {shead}, 448'); k(f's_add_u32 s40, s40, {hex(WS_CS)}')
        for nt in range(7): k(f'buffer_load_dwordx4 {CSZ[nt]}, {t3}, s[16:19], s40 offen offset:{nt * 64}')
    def scale_o():
        for dt in range(16):
            for qt in range(2):
                for j in (0, 2): k(f'v_pk_mul_f32 {O(dt, qt).sub(j, 2)}, {O(dt, qt).sub(j, 2)}, {al[qt]}')
    k(f's_cmp_eq_u32 {sMode}, 2')
    k(f's_cbranch_scc1 {lm}')
    for qt in range(2): k(f'v_rcp_f32 {al[qt][0]}, {L[qt][0]}')
    for qt in range(2): k(f'v_mul_f32 {al[qt][0]}, {al[qt][0]}, {G2[qt]}')
    for qt in range(2): k(f'v_mov_b32 {al[qt][1]}, {al[qt][0]}')
    cs_loads()
    scale_o()
    k(f's_branch {lpk}')
    k.label(lm)
    for qt in range(2):
        nA = ML[2 * qt]; nB = PML[2 * qt]; lB = PML[2 * qt + 1]
        k(f'v_min_f32 {t0}, {nA}, {nB}')
        k(f'v_sub_f32 {t1}, {t0}, {nA}')
        k(f'v_sub_f32 {t2}, {t0}, {nB}')
        k(f'v_exp_f32 {t1}, {t1}')
        k(f'v_exp_f32 {t2}, {t2}')
        k(f'v_mul_f32 {t2}, {t2}, {lB}')
        k(f'v_fma_f32 {t0}, {t1}, {L[qt][0]}, {t2}')
        k(f'v_rcp_f32 {t0}, {t0}')
        k(f'v_mul_f32 {t0}, {t0}, {G2[qt]}')
        k(f'v_mul_f32 {al[qt][0]}, {t1}, {t0}')
        k(f'v_mul_f32 {be[qt][0]}, {t2}, {t0}')
        k(f'v_mov_b32 {al[qt][1]}, {al[qt][0]}')
        k(f'v_mov_b32 {be[qt][1]}, {be[qt][0]}')
    cs_loads()
    scale_o()
    U2 = big.sub(36, 4)
    for qt in range(2):
        for u in range(8):
            src = PZ[qt * 8 + u]
            for j in range(4):
                e = U2.sub((j % 2) * 2, 2)
                k(f'v_lshlrev_b32 {e[0]}, 16, {src[j]}')
                k(f'v_and_b32 {e[1]}, 0xffff0000, {src[j]}')
                o = O(2 * u + j // 2, qt).sub((j % 2) * 2, 2)
                k(f'v_pk_fma_f32 {o}, {e}, {be[qt]}, {o}')
    k.label(lpk)
    cacc = [[big.sub((qt * 7 + nt) * 4, 4) for nt in range(7)] for qt in range(2)]
    for nt in (6, 0, 1, 2, 3, 4, 5):
        for qt in range(2):
            for j in (0, 2): k(f'v_pk_mul_f32 {cacc[qt][nt].sub(j, 2)}, {CSZ[nt].sub(j, 2)}, {NMU[qt]}')
    CF = lambda qt, u: O(2 * u, qt)
    packs = []
    for u in range(8):
        for qt in range(2):
            a = O(2 * u, qt); b = O(2 * u + 1, qt)
            packs += [(f'v_cvt_pk_bf16_f32 {a[0]}, {a[0]}, {a[1]}', None), (f'v_cvt_pk_bf16_f32 {a[1]}, {a[2]}, {a[3]}', None),
                      (f'v_cvt_pk_bf16_f32 {a[2]}, {b[0]}, {b[1]}', None), (f'v_cvt_pk_bf16_f32 {a[3]}, {b[2]}, {b[3]}', None)]
    vq = [O(2 * u + 1, qt) for u in range(8) for qt in range(2)] + [OX.sub(4 * n, 4) for n in range(7)] + [big.sub(56, 4)]
    def oacc(qt, nt):
        if nt < 16:
            i = nt * 2 + qt
            return Reg('a', i * 4 if i < 16 else 192 + (i - 16) * 4, 4)
        return vq[(nt - 16) * 2 + qt]
    UF = lambda qt, ks: cacc[qt][2 * ks]
    NG = opt.get('ng', 4)
    gt = [E.sub(0, 4), E.sub(4, 4), T.sub(0, 4), T.sub(4, 4)]
    gstreams = [[] for _ in range(NG)]
    units = [(qt, ks) for ks in range(4) for qt in range(2)]
    for ui, (qt, ks) in enumerate(units):
        g_ = gstreams[ui % NG]; tt = gt[ui % NG]
        for nt in (2 * ks, 2 * ks + 1):
            if nt > 6: continue
            a = cacc[qt][nt]
            for j in range(4): g_.append((f'v_mul_f32 {tt[j]}, {a[j]}, {a[j]}', None))
            for j in range(4): g_.append((f'v_fma_f32 {tt[j]}, {tt[j]}, {C1[qt]}, {C0[qt]}', None))
            for j in range(4): g_.append((f'v_mul_f32 {tt[j]}, {tt[j]}, {a[j]}', None))
            for j in range(4): g_.append((f'v_exp_f32 {tt[j]}, {tt[j]}', None))
            for j in range(4): g_.append((f'v_fma_f32 {tt[j]}, {tt[j]}, {CQ[qt]}, {CQ[qt]}', None))
            for j in range(4): g_.append((f'v_rcp_f32 {tt[j]}, {tt[j]}', None))
            for j in range(4): g_.append((f'v_mul_f32 {a[j]}, {a[j]}, {tt[j]}', None))
            d = UF(qt, ks); o = (nt % 2) * 2
            g_.append((f'v_cvt_pk_bf16_f32 {d[o]}, {a[0]}, {a[1]}', None))
            g_.append((f'v_cvt_pk_bf16_f32 {d[o + 1]}, {a[2]}, {a[3]}', None))
        if ks == 3:
            g_.append((f'v_mov_b32 {UF(qt, 3)[2]}, 0', None)); g_.append((f'v_mov_b32 {UF(qt, 3)[3]}, 0', None))
    k(f's_lshl_b32 s40, {shead}, 7'); k(f's_lshl_b32 s41, {sQb}, 3'); k('s_add_u32 s40, s40, s41')
    k(f's_lshl_b32 s41, {sw}, 1'); k('s_add_u32 s40, s40, s41')
    k(f's_mul_i32 s66, s40, {14 * 1024}'); k(f's_add_u32 s66, s66, {hex(WS_OP)}')
    k(f's_add_u32 s67, s66, {14 * 1024}')
    ostreams = [[], []]; oready = [[], []]
    otmp = [E, T]; opk = [[cacc[0][1], cacc[0][3], cacc[0][5]], [cacc[1][1], cacc[1][3], cacc[1][5]]]
    for u in range(14):
        for qt in range(2):
            o_ = ostreams[qt]; n0 = len(o_)
            a = oacc(qt, 2 * u); b = oacc(qt, 2 * u + 1)
            if a.kind == 'a':
                tt = otmp[qt]
                for j in range(4): o_.append((f'v_accvgpr_read_b32 {tt[j]}, {a[j]}', None))
                for j in range(4): o_.append((f'v_accvgpr_read_b32 {tt[4 + j]}, {b[j]}', None))
                a = tt.sub(0, 4); b = tt.sub(4, 4)
            p = opk[qt][u % 3]
            o_ += [(f'v_cvt_pk_bf16_f32 {p[0]}, {a[0]}, {a[1]}', None), (f'v_cvt_pk_bf16_f32 {p[1]}, {a[2]}, {a[3]}', None),
                   (f'v_cvt_pk_bf16_f32 {p[2]}, {b[0]}, {b[1]}', None), (f'v_cvt_pk_bf16_f32 {p[3]}, {b[2]}, {b[3]}', None)]
            if u and u % 4 == 0: o_.append([(f's_add_u32 s{66 + qt}, s{66 + qt}, 0x1000', None)])
            o_.append((f'buffer_store_dwordx4 {p}, {l16}, s[16:19], s{66 + qt} offen offset:{(u % 4) * 1024}' + opt.get('opmod', ''), None))
            oready[qt] += [2 * (NC_F + NO_F + 8 * u + 7) + 1 + 4] * (len(o_) - n0)
    NF = NC_F + NO_F + NU_F
    pst = dict(items=packs, keep=True)
    gst = [dict(items=g_, keep=True, rr=True) for g_ in gstreams]
    ost = [dict(items=o_, keep=True, rr=True) for o_ in ostreams]
    odone = [0, 0]
    NH = (NF + 15) // 16
    for h in range(NH):
        if opt.get('tstamp') and h in (0, 6, 20): stamp_at(k, {0: 1, 6: 2, 20: 3}[h])
        par = (h // 2) % 2
        B = (lambda i: Kf(i // 8, i % 8)) if h % 2 == 0 else Vf
        M = []
        for f in range(16 * h, min(NF, 16 * h + 16)):
            b = B(f - 16 * h)
            for qt in range(2):
                if f < NC_F:
                    ks, nt = divmod(f, 7)
                    M.append(f'{MF} {cacc[qt][nt]}, {b}, {X1(qt, ks)}, {cacc[qt][nt]}')
                elif f < NC_F + NO_F:
                    ks, nt = divmod(f - NC_F, 28)
                    M.append(f'{MF} {oacc(qt, nt)}, {b}, {CF(qt, ks)}, {"0" if ks == 0 else oacc(qt, nt)}')
                else:
                    nt, ks = divmod(f - NC_F - NO_F, 4)
                    M.append(f'{MF} {oacc(qt, nt)}, {b}, {UF(qt, ks)}, {oacc(qt, nt)}')
        g0 = 32 * h
        st = []
        nxt_n = max(0, min(16, NF - 16 * (h + 1)))
        if h % 2 == 0:
            m = h // 2
            if m < 3: k('s_waitcnt vmcnt(16) lgkmcnt(0)')
            else: k.wait(f'tw{m}'); k('s_waitcnt lgkmcnt(0)')
            k('s_barrier')
            dm = dma_items(par) if m + 3 <= 13 else []
            dm = [[(x, f'tw{m + 3}') for x, _ in it] if isinstance(it, list) else (it[0], f'tw{m + 3}') for it in dm]
            st.append(dict(items=dm[:8], start=2, stride=7))
            st.append(dict(items=vreads(par, nxt_n), stride=1.5))
        else:
            k('s_waitcnt lgkmcnt(0)')
            st.append(dict(items=dm[8:], start=2, stride=7))
            st.append(dict(items=kreads(par, nxt_n) + rp_toggle(par), stride=1.5))
        if pst['items']:
            if g0 + 32 > 2 * NC_F: pst['by'] = {2 * NC_F - g0 - 2: 9999}
            st.append(pst)
        gs = 2 * NC_F + 4 - g0
        if gs < 32:
            for s_ in gst:
                if not s_['items']: continue
                s_['start'] = max(0, gs)
                ge = 2 * (NC_F + NO_F) - g0
                if ge < 32: s_['by'] = {max(0, ge - 2): 9999}
                st.append(s_)
        for qt in range(2):
            if g0 + 32 > oready[qt][0]:
                ost[qt]['gate'] = (lambda qt_, g0_, od: (lambda gi, p: g0_ + gi >= oready[qt_][od + p]))(qt, g0, odone[qt])
                st.insert(1, ost[qt])
        before = [len(o_['items']) for o_ in ost]
        lst, left = pack(M, st)
        for qt in range(2): odone[qt] += before[qt] - len(ost[qt]['items'])
        if opt.get('verbose'): print('tail half', h, 'overflow', left, 'pack', len(pst['items']), 'gelu', [len(s_['items']) for s_ in gst], 'out', [len(o_['items']) for o_ in ost])
        emit(lst)
    if stamp and not opt.get('xs'): stamp_at(k, 2)
    a_, b_ = ost[0]['items'], ost[1]['items']
    while a_ or b_:
        if a_: emit([a_.pop(0)])
        if b_: emit([b_.pop(0)])
    if stamp:
        if not opt.get('xs'): stamp_at(k, 3)
        stamp_end(k, 16, t0, t1)
    k.label(f'{name}_end')
    k('s_endpgm')
    k.finalize()
    return k

def gen_red(name='red_kernel', stamp=False):
    k = Kernel(name); V = Alloc('v', 1, 128)
    k('s_cmp_ge_u32 s2, 256')
    k(f's_cbranch_scc1 {name}_end')
    k(f's_load_dwordx2 s[4:5], s[0:1], {ARG["out"]}')
    k(f's_load_dwordx2 s[6:7], s[0:1], {ARG["ws"]}')
    if stamp: stamp_begin(k)
    lane = V(); t0 = V(); t1 = V(); vo = V(); g = V(); va = V()
    P = [V(4) for _ in range(16)]; X = V(4); A = V(8, 4); T = V(2)
    k(f'v_and_b32 {lane}, 63, v0')
    k(f'v_lshrrev_b32 {t0}, 6, v0')
    k(f'v_readfirstlane_b32 s20, {t0}')
    k(f's_mul_i32 s21, s2, {7 * 1024}')
    k(f'v_lshlrev_b32 {va}, 4, v0')
    k('s_waitcnt lgkmcnt(0)')
    srd(k, 12, 6, 256 * MB)
    k(f's_add_u32 s22, s21, {hex(WS_OP)}')
    for h in range(16):
        k(f'buffer_load_dwordx4 {P[h]}, {va}, s[12:15], s22 offen')
        if h < 15: k(f's_add_u32 s22, s22, {128 * 14 * 1024}')
    k(f's_add_u32 s22, s21, {hex(WS_X1)}')
    k(f'buffer_load_dwordx4 {X}, {va}, s[12:15], s22 offen')
    k(f'v_and_b32 {t0}, 15, {lane}')
    k('s_lshr_b32 s23, s2, 1'); k('s_lshl_b32 s23, s23, 4')
    k(f'v_add_u32 {t0}, s23, {t0}')
    k(f'v_lshlrev_b32 {t1}, 2, {t0}')
    k(f's_mov_b32 s22, {hex(WS_G)}')
    k(f'buffer_load_dword {g}, {t1}, s[12:15], s22 offen')
    srd(k, 8, 4, 2048 * 896)
    k(f'v_mul_u32_u24 {vo}, 896, {t0}')
    k(f'v_bfe_u32 {t1}, {lane}, 4, 1')
    k(f'v_lshl_add_u32 {vo}, {t1}, 5, {vo}')
    k(f'v_lshrrev_b32 {t1}, 5, {lane}')
    k(f'v_lshl_add_u32 {vo}, {t1}, 4, {vo}')
    k('s_and_b32 s23, s2, 1'); k('s_mul_i32 s23, s23, 7'); k('s_add_u32 s23, s23, s20'); k('s_lshl_b32 s23, s23, 6')
    for h in range(16):
        for j in range(4):
            if h == 0:
                k(f'v_lshlrev_b32 {A[2 * j]}, 16, {P[h][j]}')
                k(f'v_and_b32 {A[2 * j + 1]}, 0xffff0000, {P[h][j]}')
            else:
                k(f'v_lshlrev_b32 {T[0]}, 16, {P[h][j]}')
                k(f'v_and_b32 {T[1]}, 0xffff0000, {P[h][j]}')
                k(f'v_pk_add_f32 {A.sub(2 * j, 2)}, {A.sub(2 * j, 2)}, {T}')
    k(f'v_sub_f32 {g}, 1.0, {g}')
    for j in range(4):
        k(f'v_lshlrev_b32 {T[0]}, 16, {X[j]}')
        k(f'v_and_b32 {T[1]}, 0xffff0000, {X[j]}')
        k(f'v_fma_f32 {A[2 * j]}, {T[0]}, {g}, {A[2 * j]}')
        k(f'v_fma_f32 {A[2 * j + 1]}, {T[1]}, {g}, {A[2 * j + 1]}')
    for j in range(4): k(f'v_cvt_pk_bf16_f32 {X[j]}, {A[2 * j]}, {A[2 * j + 1]}')
    k(f'v_permlane16_swap_b32 {X[0]}, {X[2]}')
    k(f'v_permlane16_swap_b32 {X[1]}, {X[3]}')
    k(f'buffer_store_dwordx4 {X}, {vo}, s[8:11], s23 offen')
    if stamp:
        for i in range(4): stamp_at(k, i)
        stamp_end(k, 12, t0, t1)
    k.label(f'{name}_end')
    k('s_endpgm')
    k.finalize()
    return k

if __name__ == '__main__':
    k = gen_k2(stamp=True, opt=dict(verbose=1))
    print(k.stats(), k.maxregs())
    k = gen_red(); print(k.stats(), k.maxregs())
```

```python
from common import *
from small import f2u, MF, LOG2E, GK0, GK1, gelu, xlane_sum

GL = 12288
RL = 131072

BIAS = 40.0
PART_STRIDE = 72 * 1024
MEGA_LDS = 163840
FL_KV, FL_H, FL_X, FL_P, FL_T, FL_R, FL_F = 0, 16, 32, 48, 176, 192, 208
HPL = 32768 + 128
XT = 131072

def gen_mega(name='mega_kernel', stamp=False, opt={}):
    UAT = opt.get('UAT', [36, 34, 33, 33, 33, 33, 32, 36])
    assert all(4 <= UAT[i] <= 4 * (15 - i) for i in range(7)) and UAT[7] == 36
    UALO = sum(UAT[i] << (8 * i) for i in range(4)); UAHI = sum(UAT[4 + i] << (8 * i) for i in range(4))
    SC1 = opt.get('sc1', ' sc1')
    INRED = opt.get('inred', 1)
    NEARLY = opt.get('nearly', 2)
    k = Kernel(name)
    V = Alloc('v', 1, 256)
    WB = 65536
    k('s_cmp_ge_u32 s2, 256')
    k(f's_cbranch_scc1 {name}_end')
    k(f's_load_dwordx8 s[4:11], s[0:1], 0')
    k(f's_load_dwordx4 s[12:15], s[0:1], 32')
    k(f's_load_dwordx8 s[64:71], s[0:1], 56')
    k(f's_load_dwordx2 s[72:73], s[0:1], {ARG["gw"]}')
    k(f's_load_dwordx2 s[74:75], s[0:1], {ARG["ws"]}')
    k(f's_load_dwordx2 s[50:51], s[0:1], {ARG["dbg"]}')
    if stamp: st_begin(k)
    srt, shead, swh, sw, srb = 's16', 's17', 's18', 's19', 's44'
    k('s_and_b32 s32, s2, 7')
    k('s_lshr_b32 s33, s2, 3')
    k(f's_and_b32 {srt}, s33, 7')
    k(f's_and_b32 {srb}, s33, 15')
    k(f's_lshr_b32 {shead}, s33, 4')
    k('s_lshl_b32 s32, s32, 1')
    k(f's_add_u32 {shead}, {shead}, s32')
    k(f's_bfe_u32 {swh}, s33, 0x10003')
    lane = V(); t0 = V(); t1 = V(); t2 = V(); t3 = V()
    k(f'v_and_b32 {lane}, 63, v0')
    k(f'v_lshrrev_b32 {t0}, 6, v0')
    k(f'v_readfirstlane_b32 {sw}, {t0}')
    if opt.get('cpf', 1) == 1:
        k('s_getpc_b64 s[40:41]')
        k.label(f'{name}_pc')
        k(f's_lshl_b32 s42, s33, 2')
        k(f'v_add_u32 {t1}, s42, {t0}')
        k(f'v_lshl_add_u32 {t1}, {lane}, 7, {t1}')
        k(f'v_lshlrev_b32 {t1}, 7, {t1}')
        k(f'v_min_u32 {t1}, {name}_end-{name}_pc, {t1}')
        k(f's_mov_b64 exec, 0xff')
        k(f'global_load_dword v254, {t1}, s[40:41]')
        k(f's_mov_b64 exec, -1')
    dA = [V() for _ in range(4)]; dW = [V() for _ in range(4)]
    k(f'v_lshrrev_b32 {t0}, 3, {lane}')
    k(f'v_lshlrev_b32 {t0}, 11, {t0}')
    k(f's_lshl_b32 s32, {srt}, 19')
    k(f's_lshr_b32 s33, {sw}, 1'); k('s_lshl_b32 s33, s33, 18'); k('s_add_u32 s32, s32, s33')
    k(f's_and_b32 s33, {sw}, 1'); k('s_lshl_b32 s33, s33, 16'); k('s_add_u32 s32, s32, s33')
    k(f'v_add_u32 {t0}, s32, {t0}')
    k(f'v_lshrrev_b32 {t1}, 4, {lane}')
    k(f'v_and_b32 {t2}, 7, {lane}')
    k(f'v_xor_b32 {t1}, {t1}, {t2}')
    k(f'v_lshl_add_u32 {dA[0]}, {t1}, 4, {t0}')
    k(f'v_xor_b32 {dA[1]}, 64, {dA[0]}')
    k(f'v_add_u32 {dA[1]}, {hex(8 * 2048 - 1024)}, {dA[1]}')
    for i in (2, 3): k(f'v_add_u32 {dA[i]}, {hex(16 * 2048 - 2048)}, {dA[i - 2]}')
    k(f'v_lshrrev_b32 {t0}, 5, {lane}')
    k(f'v_bfe_u32 {t1}, {lane}, 1, 4')
    k(f'v_xor_b32 {t1}, {t1}, {t0}')
    k(f's_and_b32 s32, {sw}, 1')
    k(f's_lshl_b32 s32, s32, 2')
    k(f'v_xor_b32 {t1}, s32, {t1}')
    k(f'v_lshlrev_b32 {t0}, 13, {t0}')
    k(f's_lshl_b32 s32, {shead}, 9')
    k(f's_lshl_b32 s33, {sw}, 16')
    k(f's_add_u32 s32, s32, s33')
    k(f'v_add_u32 {t0}, s32, {t0}')
    k(f'v_and_b32 {t2}, 1, {lane}')
    k(f'v_lshl_add_u32 {t0}, {t2}, 4, {t0}')
    k(f'v_lshl_add_u32 {dW[0]}, {t1}, 5, {t0}')
    k(f'v_xor_b32 {t1}, 2, {t1}')
    k(f'v_lshl_add_u32 {dW[1]}, {t1}, 5, {t0}')
    k(f'v_add_u32 {dW[1]}, {hex(2 * 8192 - 1024)}, {dW[1]}')
    k(f'v_add_u32 {dW[2]}, {hex(4 * 8192 - 2048)}, {dW[0]}')
    k(f'v_add_u32 {dW[3]}, {hex(4 * 8192 - 2048)}, {dW[1]}')
    k(f's_lshl_b32 s34, {sw}, 12')
    k('s_mov_b32 s36, 0')
    k('s_mov_b32 s37, 0')
    k('s_waitcnt lgkmcnt(0)')
    if stamp: st_begin2(k)
    srd(k, 20, 6, 2048 * 1024 * 2)
    k(f's_cmp_eq_u32 {swh}, 0')
    k('s_cselect_b32 s24, s10, s12')
    k('s_cselect_b32 s25, s11, s13')
    k('s_and_b32 s25, s25, 0xffff')
    k(f's_mov_b32 s26, {hex(1024 * 4096 * 2)}')
    k('s_mov_b32 s27, 0x20000')
    PAIR = opt.get('pair', 1); PAIRQ = opt.get('pairq', 1)
    def apair(s0, regs=None, base='s34', srd_='s[20:23]'):
        L = []
        for i, r_ in enumerate(regs or dA):
            L += [[(f's_add_u32 m0, {base}, {hex(s0 * 16384)}', None)], (f'buffer_load_dwordx4 {r_}, {srd_}, s36 offen offset:{i * 1024} lds', f'dma{s0}')]
            L += [[(f's_add_u32 m0, {base}, {hex((s0 + 1) * 16384 - 64)}', None)], (f'buffer_load_dwordx4 {r_}, {srd_}, s36 offen offset:{i * 1024 + 64} lds', f'dma{s0 + 1}')]
        return L + [[('s_add_u32 s36, s36, 128', None)]]
    def wdma(slot, srd_='s[24:27]'):
        L = [[(f's_add_u32 m0, s34, {hex(WB + slot * 16384)}', None)]]
        L += [(f'buffer_load_dwordx4 {dW[i]}, {srd_}, s37 offen offset:{i * 1024} lds', f'dma{slot}') for i in range(4)]
        return L + [[(f's_add_u32 s37, s37, {hex(32 * 8192)}', None)]]
    def adma(slot):
        L = [[(f's_add_u32 m0, s34, {hex(slot * 16384)}', None)]]
        L += [(f'buffer_load_dwordx4 {dA[i]}, s[20:23], s36 offen offset:{i * 1024} lds', f'dma{slot}') for i in range(4)]
        return L + [[(f's_add_u32 s36, s36, {64 * 2048}' if slot % 2 == 0 else f's_sub_u32 s36, s36, {64 * 2048 - 128}', None)]]
    dma = lambda st: [wdma(3) + adma(0) + wdma(0), adma(1) + wdma(1), adma(2) + wdma(2), adma(3)][st]
    def code_pf(l0, l1, ta, td, nl):
        pc = k.newlabel('pc')
        k('s_getpc_b64 s[40:41]')
        k.label(pc)
        k(f's_add_u32 s40, s40, {l0}-{pc}'); k('s_addc_u32 s41, s41, 0')
        k(f'v_and_b32 {ta}, 63, v0')
        k(f'v_lshlrev_b32 {ta}, 7, {ta}')
        k(f's_lshr_b32 s42, s2, 3'); k('s_lshl_b32 s42, s42, 2'); k(f's_add_u32 s42, s42, {sw}')
        k(f'v_add_u32 {ta}, s42, {ta}')
        k(f'v_lshlrev_b32 {ta}, 7, {ta}')
        k(f'v_min_u32 {ta}, {l1}-{l0}, {ta}')
        k(f's_mov_b64 exec, {(1 << nl) - 1}')
        k(f'global_load_dword {td}, {ta}, s[40:41]')
        k('s_mov_b64 exec, -1')
    def emit(lst):
        for it in lst:
            for x, tg in (it if isinstance(it, list) else [it]): k(x, tag=tg)
    def pst(n):
        if opt.get('its'):
            k('s_memtime s[80:81]'); k('s_waitcnt lgkmcnt(0)'); k('s_sub_u32 s80, s80, s96')
            k(f'v_writelane_b32 v255, s80, {n}')
    if opt.get('its'): k('v_mov_b32 v255, 0')
    pst(52)
    if opt.get('tlb'):
        k(f'v_lshlrev_b32 {t0}, 17, {lane}')
        k(f'buffer_load_dword {t1}, {t0}, s[24:27], 0 offen')
    S1P = opt.get('st1pos', 'first')
    rest1 = []
    if opt.get('pflate', 1):
        emit(dma(0))
        if S1P == 'first': emit(dma(1))
        elif opt.get('a1first'): emit(adma(1)); rest1 = wdma(1)
        else: rest1 = dma(1)
    pst(53)
    cs1 = [V(4), V(4)]; rs = [V(4), V(4)]
    pf = rs[0][0]; pd = rs[0][1]
    PFT = f'buffer_load_dword {pd}, {pf}, s[76:79], s39 offen' + opt.get('pmod', '')
    PFI = [[(PFT, None)], [('s_add_u32 s39, s39, s3', None)]]
    warm = opt.get('warm', 1)
    l2_, l3_, lgo, lsk = k.newlabel('p2'), k.newlabel('p3'), k.newlabel('pg'), k.newlabel('ps')
    k('s_mov_b32 s79, 0x20000')
    k('s_mov_b32 s39, 0')
    k(f's_cmp_eq_u32 {sw}, 2'); k(f's_cbranch_scc1 {l2_}')
    k(f's_cmp_eq_u32 {sw}, 3'); k(f's_cbranch_scc1 {l3_}')
    k('s_mov_b32 s76, s20'); k('s_mov_b32 s77, s21'); k('s_mov_b32 s78, s22')
    k('s_mov_b32 s3, 256')
    k(f's_lshr_b32 s32, s2, 6')
    k(f's_lshl_b32 s32, s32, 1'); k(f's_add_u32 s32, s32, {sw}')
    k(f's_lshl_b32 s32, s32, 16')
    k(f's_lshl_b32 s33, {srt}, 19'); k('s_add_u32 s32, s32, s33')
    k(f'v_lshrrev_b32 {t0}, 1, {lane}')
    k(f'v_lshlrev_b32 {t0}, 11, {t0}')
    k(f'v_and_b32 {t1}, 1, {lane}')
    k(f'v_lshl_add_u32 {t0}, {t1}, 7, {t0}')
    k(f'v_add_u32 {pf}, s32, {t0}')
    k(f's_branch {lgo}')
    k.label(l2_)
    k('s_mov_b32 s76, s24'); k('s_mov_b32 s77, s25'); k('s_mov_b32 s78, s26')
    k(f's_mov_b32 s3, {128 * 8192}')
    k(f's_lshl_b32 s32, {srt}, 17')
    k(f's_lshl_b32 s33, {shead}, 9'); k('s_add_u32 s32, s32, s33')
    k(f'v_lshrrev_b32 {t0}, 2, {lane}')
    k(f'v_lshlrev_b32 {t0}, 13, {t0}')
    k(f'v_and_b32 {t1}, 3, {lane}')
    k(f'v_lshl_add_u32 {t0}, {t1}, 7, {t0}')
    k(f'v_add_u32 {pf}, s32, {t0}')
    k.label(lgo)
    if opt.get('pfhalf', 1): k('s_lshr_b32 s39, s3, 1')
    if warm:
        for _ in range(opt.get('pfn', 1)): emit(PFI)
    k(f's_branch {lsk}')
    k.label(l3_)
    lo = 64
    for base, nbytes in ((4, 2048 * 896), (64, 448 * 896), (66, 448 * 896), (66, 0)):
        n = max(1, -(-nbytes // (64 * 7 * 128)))
        if lo == 64:
            k(f's_mov_b32 s76, s{base}'); k(f's_mov_b32 s77, s{base + 1}'); k(f's_mov_b32 s78, {nbytes}'); k(f's_mov_b32 s33, {lo}'); k(f's_mov_b32 s3, {n}')
        else:
            k(f's_cmp_ge_u32 s2, {lo}')
            k(f's_cselect_b32 s76, s{base}, s76'); k(f's_cselect_b32 s77, s{base + 1}, s77'); k(f's_cselect_b32 s78, {nbytes}, s78')
            k(f's_cselect_b32 s33, {lo}, s33'); k(f's_cselect_b32 s3, {n}, s3')
        lo += n
    k('s_sub_u32 s32, s2, s33')
    k(f'v_mul_u32_u24 {t0}, s3, {lane}')
    k(f'v_add_u32 {t0}, s32, {t0}')
    k(f'v_lshlrev_b32 {pf}, 7, {t0}')
    k(f's_mul_i32 s3, s3, {64 * 128}')
    lq_ = k.newlabel('pq')
    k('s_cmp_ge_u32 s2, 64'); k(f's_cbranch_scc1 {lq_}')
    k('s_mov_b32 s76, s8'); k('s_mov_b32 s77, s9'); k(f's_mov_b32 s78, {448 * 8192}'); k(f's_mov_b32 s3, {64 * 8192}')
    k('s_and_b32 s32, s2, 0x38'); k('s_lshl_b32 s32, s32, 13')
    k('s_and_b32 s33, s2, 7'); k('s_lshl_b32 s33, s33, 10'); k('s_add_u32 s32, s32, s33')
    k(f'v_lshrrev_b32 {t0}, 3, {lane}'); k(f'v_lshlrev_b32 {t0}, 13, {t0}')
    k(f'v_and_b32 {t1}, 7, {lane}'); k(f'v_lshl_add_u32 {t0}, {t1}, 7, {t0}')
    k(f'v_add_u32 {pf}, s32, {t0}')
    k.label(lq_)
    k('s_and_b32 s77, s77, 0xffff')
    k.label(lsk)
    if not opt.get('pflate', 1):
        for st in range(opt.get('n0', 0)): emit(dma(st))
    if opt.get('cpf', 1) == 2: code_pf(f'{name}_V', f'{name}_end', t0, Reg('v', 254), 8)
    pst(54)
    rA = V(); rW = [V() for _ in range(8)]
    g = V(); r = V()
    k(f'v_lshrrev_b32 {g}, 4, {lane}')
    k(f'v_bfe_u32 {r}, {lane}, 2, 2')
    k(f'v_sub_u32 {t0}, 0, {r}')
    k(f'v_xor_b32 {t0}, {t0}, {g}')
    k(f'v_and_b32 {t0}, 3, {t0}')
    k(f'v_and_b32 {t1}, 15, {lane}')
    k(f'v_lshlrev_b32 {t1}, 6, {t1}')
    k(f'v_lshl_add_u32 {t1}, {t0}, 4, {t1}')
    k(f's_lshr_b32 s45, {sw}, 1')
    k(f's_and_b32 s46, {sw}, 1')
    rAk = [rA, V()]
    k(f'v_bfe_u32 {t0}, {lane}, 1, 3')
    k(f'v_xor_b32 {t0}, {t0}, {g}')
    k(f'v_and_b32 {t2}, 15, {lane}')
    k(f'v_lshlrev_b32 {t2}, 7, {t2}')
    k(f'v_lshl_add_u32 {t2}, {t0}, 4, {t2}')
    k(f's_lshl_b32 s32, s45, 13')
    k(f'v_add_u32 {rAk[0]}, s32, {t2}')
    k(f'v_xor_b32 {rAk[1]}, 64, {rAk[0]}')
    k(f'v_sub_u32 {t3}, 0, {g}')
    k(f'v_xor_b32 {t3}, {t3}, {lane}')
    k(f'v_and_b32 {t3}, 3, {t3}')
    rA2 = [V(), V()]
    k(f's_lshl_b32 s32, s45, 12')
    k(f's_lshl_b32 s33, s46, 11')
    k(f's_add_u32 s32, s32, s33')
    k(f'v_add_u32 {rA2[0]}, s32, {t1}')
    k(f'v_xor_b32 {rA2[1]}, 0x800, {rA2[0]}')
    k(f'v_lshl_add_u32 {t0}, {g}, 3, {r}')
    k(f'v_and_b32 {t1}, 3, {lane}')
    k(f'v_lshlrev_b32 {t1}, 3, {t1}')
    r1 = [V(), V()]; r3 = V(); rG = V()
    k(f'v_lshl_add_u32 {r1[0]}, {t0}, 6, {t1}')
    k(f'v_bfe_u32 {t2}, {lane}, 4, 1')
    k(f'v_lshl_add_u32 {r1[0]}, {t2}, 5, {r1[0]}')
    k(f'v_xor_b32 {r1[1]}, 32, {r1[0]}')
    k(f'v_lshl_add_u32 {r3}, {t0}, 5, {t1}')
    k(f'v_lshlrev_b32 {t0}, 9, {t0}')
    k(f'v_add_u32 {t0}, {t0}, {t1}')
    k(f's_lshl_b32 s32, s46, 8')
    k(f's_add_u32 s32, s32, {hex(WB)}')
    k(f'v_add_u32 {t0}, s32, {t0}')
    k(f'v_bfe_u32 {t1}, {lane}, 2, 3')
    for nt in range(8):
        k(f'v_xor_b32 {t2}, {nt}, {t1}')
        k(f'v_lshl_add_u32 {rW[nt]}, {t2}, 5, {t0}')
    k(f'v_and_b32 {t0}, 1, {lane}')
    k(f'v_xor_b32 {t0}, 1, {t0}')
    k(f'v_lshlrev_b32 {t0}, 10, {t0}')
    k(f'v_lshl_add_u32 {rG}, {g}, 4, {t0}')
    k(f'v_add_u32 {rG}, {hex(GL)}, {rG}')
    ones = V(4)
    for j in range(4): k(f'v_mov_b32 {ones[j]}, 0x3f803f80')
    so = V()
    k(f'v_lshlrev_b32 {so}, 4, {lane}')
    dA2 = [V(), V()]; dX = V()
    k(f'v_lshrrev_b32 {t0}, 2, {lane}')
    k(f's_lshl_b32 s32, {srb}, 7')
    k(f's_lshl_b32 s33, {sw}, 5')
    k(f's_add_u32 s32, s32, s33')
    k(f'v_add_u32 {t0}, s32, {t0}')
    k(f'v_mul_u32_u24 {t0}, 896, {t0}')
    k(f'v_lshl_add_u32 {dA2[0]}, {t3}, 4, {t0}')
    k(f'v_add_u32 {dA2[1]}, {hex(16 * 896 - 1024)}, {dA2[0]}')
    lw1, lxd = k.newlabel('xw'), k.newlabel('xd')
    k(f's_mov_b32 s55, 0x20000')
    k(f's_cmp_lt_u32 {sw}, 2')
    k(f's_cbranch_scc1 {lw1}')
    k(f's_mov_b32 s52, s68')
    k(f's_and_b32 s53, s69, 0xffff')
    k(f's_cmp_eq_u32 {sw}, 2')
    k(f's_cselect_b32 s54, {hex(448 * 3584)}, 0')
    k(f's_cmp_lt_u32 s2, 112')
    k(f's_cselect_b32 s54, s54, 0')
    k(f's_mov_b32 s47, {32 * 3584}')
    k(f'v_lshrrev_b32 {t0}, 1, {lane}')
    k(f'v_mul_u32_u24 {t0}, 3584, {t0}')
    k(f'v_and_b32 {t1}, 1, {lane}')
    k(f'v_lshl_add_u32 {t0}, {t1}, 4, {t0}')
    k('s_and_b32 s32, s2, 7'); k('s_mul_i32 s32, s32, 14'); k('s_lshr_b32 s33, s2, 3'); k('s_add_u32 s32, s32, s33')
    k(f's_lshl_b32 s32, s32, 5')
    k(f'v_add_u32 {dX}, s32, {t0}')
    k(f's_branch {lxd}')
    k.label(lw1)
    k(f's_mov_b32 s52, s64')
    k(f's_and_b32 s53, s65, 0xffff')
    k(f's_cmp_lt_u32 {shead}, 14')
    k(f's_cselect_b32 s54, {hex(448 * 896)}, 0')
    k(f's_mov_b32 s47, {32 * 896}')
    k(f'v_lshrrev_b32 {t0}, 2, {lane}')
    k(f's_lshl_b32 s32, {sw}, 4')
    k(f'v_add_u32 {t0}, s32, {t0}')
    k(f'v_mul_u32_u24 {t0}, 896, {t0}')
    k(f'v_lshrrev_b32 {t1}, 4, {lane}')
    k(f'v_and_b32 {t1}, 2, {t1}')
    k(f'v_xor_b32 {t1}, {t1}, {lane}')
    k(f'v_and_b32 {t1}, 3, {t1}')
    k(f'v_lshl_add_u32 {t0}, {t1}, 4, {t0}')
    k(f's_lshl_b32 s32, {shead}, 6')
    k(f'v_add_u32 {dX}, s32, {t0}')
    k.label(lxd)
    srd(k, 56, 4, 2048 * 896)
    srd(k, 60, 8, 448 * 8192)
    srd(k, 28, 74, 256 * MB)
    vR = [rs[0][2], rs[0][3]]; rR = [rs[1][j] for j in range(4)]
    vRc = V()
    k(f'v_bfe_u32 {t1}, {lane}, 1, 2')
    k(f'v_lshrrev_b32 {t2}, 4, {lane}')
    k(f'v_xor_b32 {t1}, {t1}, {t2}')
    k(f'v_lshlrev_b32 {t1}, 5, {t1}')
    k(f'v_and_b32 {t2}, 1, {lane}')
    k(f'v_lshl_add_u32 {vRc}, {t2}, 4, {t1}')
    k(f's_lshl_b32 s32, {sw}, 13')
    k(f's_add_u32 s97, s32, {hex(RL)}')
    k(f'v_lshrrev_b32 {t0}, 2, {lane}')
    k(f'v_lshlrev_b32 {t0}, 7, {t0}')
    k(f'v_and_b32 {t1}, 3, {lane}')
    k(f'v_lshl_add_u32 {t0}, {t1}, 3, {t0}')
    k(f'v_add_u32 {t0}, s97, {t0}')
    k(f'v_bfe_u32 {t1}, {lane}, 3, 2')
    for nt in range(4):
        k(f'v_xor_b32 {t2}, {nt}, {t1}')
        k(f'v_lshl_add_u32 {rR[nt]}, {t2}, 5, {t0}')
    JS = [dict(srd=4, step='s8', off='s9', dst=10), dict(srd=64, step='s72', off='s73', dst=98)]
    def pairdst(D, c0):
        k('s_add_u32 s33, s33, s42')
        k('s_lshl_b32 s40, s40, 1')
        k('s_bitcmp1_b32 s42, 10'); k('s_cselect_b32 s41, 7, 0'); k('s_add_u32 s40, s40, s41')
        for p_ in range(2):
            k(f's_add_u32 s41, s40, {p_}')
            k('s_sub_u32 s43, s41, 14'); k('s_cselect_b32 s41, s41, s43')
            k('s_mul_i32 s41, s41, 24'); k('s_add_u32 s41, s41, s33')
            for t_ in range(2): k(f's_add_u32 s{D + 2 * p_ + t_}, s41, {c0 + t_}')
    def job_setup(i):
        J = JS[i]; R = J['srd']; st_ = J['step']; of_ = J['off']; D = J['dst']
        lo_, l4_, ld_ = k.newlabel('jo'), k.newlabel('j4'), k.newlabel('jd')
        k(f's_lshl_b32 s32, s2, 2'); k(f's_add_u32 s32, s32, {sw}')
        k(f's_lshl_b32 s32, s32, 1'); k(f's_add_u32 s32, s32, {i}')
        k(f's_mov_b32 s{R + 3}, 0x20000')
        k('s_cmp_ge_u32 s32, 392'); k(f's_cbranch_scc1 {lo_}')
        k(f's_mov_b32 s{R}, s68'); k(f's_and_b32 s{R + 1}, s69, 0xffff'); k(f's_mov_b32 s{R + 2}, {448 * 3584}')
        k('s_mul_i32 s33, s32, 2341'); k('s_lshr_b32 s33, s33, 16')
        k('s_mul_i32 s40, s33, 28'); k('s_sub_u32 s40, s32, s40')
        k(f's_mul_i32 {of_}, s33, {32 * 3584}'); k('s_lshl_b32 s41, s40, 7'); k(f's_add_u32 {of_}, {of_}, s41')
        k(f's_mov_b32 {st_}, 3584')
        k('s_mul_i32 s33, s33, 7')
        k('s_lshl_b32 s40, s40, 2')
        for j in range(4):
            k(f's_add_u32 s41, s40, {j}')
            k('s_mul_i32 s42, s41, 9363'); k('s_lshr_b32 s42, s42, 16')
            k('s_mul_i32 s43, s42, 1017')
            k('s_add_u32 s41, s41, s33')
            k(f's_add_u32 s{D + j}, s41, s43')
        k(f's_branch {ld_}')
        k.label(lo_)
        k(f's_mov_b32 {st_}, 896')
        k('s_cmp_ge_u32 s32, 1288'); k(f's_cbranch_scc1 {l4_}')
        k(f's_mov_b32 s{R}, s14'); k(f's_and_b32 s{R + 1}, s15, 0xffff'); k(f's_mov_b32 s{R + 2}, {4096 * 896}')
        k('s_sub_u32 s32, s32, 392')
        k('s_mul_i32 s33, s32, 9363'); k('s_lshr_b32 s33, s33, 16')
        k('s_mul_i32 s40, s33, 7'); k('s_sub_u32 s40, s32, s40')
        k(f's_mul_i32 {of_}, s33, {32 * 896}'); k('s_lshl_b32 s41, s40, 7'); k(f's_add_u32 {of_}, {of_}, s41')
        k('s_lshr_b32 s42, s33, 3'); k('s_lshl_b32 s42, s42, 10')
        k('s_and_b32 s33, s33, 7'); k('s_lshl_b32 s33, s33, 1')
        pairdst(D, NC_F)
        k(f's_branch {ld_}')
        k.label(l4_)
        k(f's_mov_b32 s{R}, s70'); k(f's_and_b32 s{R + 1}, s71, 0xffff')
        k('s_cmp_lt_u32 s32, 1736'); k(f's_cselect_b32 s{R + 2}, {1792 * 896}, 0')
        k('s_sub_u32 s32, s32, 1288')
        k('s_mul_i32 s33, s32, 9363'); k('s_lshr_b32 s33, s33, 16')
        k('s_mul_i32 s40, s33, 7'); k('s_sub_u32 s40, s32, s40')
        k('s_lshr_b32 s42, s33, 2'); k('s_and_b32 s33, s33, 3')
        k(f's_mul_i32 {of_}, s42, {112 * 896}'); k(f's_mul_i32 s41, s33, {32 * 896}'); k(f's_add_u32 {of_}, {of_}, s41')
        k('s_lshl_b32 s41, s40, 7'); k(f's_add_u32 {of_}, {of_}, s41')
        k('s_lshl_b32 s42, s42, 10')
        k('s_lshl_b32 s33, s33, 1')
        pairdst(D, NC_F + 16)
        k.label(ld_)
        for j in range(4):
            d = f's{D + j}'
            k(f's_lshr_b32 s40, {d}, 10')
            k(f's_cmp_ge_u32 s40, 16'); k(f's_cselect_b32 s40, 1100, s40')
            k(f's_mul_i32 s40, s40, {WHS}')
            k(f's_bfe_u32 s41, {d}, 0x50005'); k('s_lshl_b32 s41, s41, 14'); k('s_add_u32 s40, s40, s41')
            k(f's_mov_b32 s41, {hex(WJ + 16384)}')
            k(f's_bitcmp1_b32 {d}, 4'); k(f's_cmov_b32 s41, {hex(WJ + WS_V)}')
            k('s_add_u32 s40, s40, s41')
            k(f's_and_b32 s41, {d}, 15'); k('s_lshl_b32 s41, s41, 10')
            k(f's_add_u32 {d}, s40, s41')
        k(f'v_lshrrev_b32 {vR[i]}, 3, {lane}')
        k(f'v_mul_lo_u32 {vR[i]}, {vR[i]}, {st_}')
        k(f'v_add_u32 {vR[i]}, {vR[i]}, {vRc}')
        k(f's_lshl_b32 {st_}, {st_}, 3')
    k('s_mov_b64 s[48:49], s[72:73]'); k('s_mov_b32 s38, s66'); k('s_mov_b32 s35, s67')
    S2P = opt.get('st2pos', 'pre'); S3P = opt.get('st3pos', 'loop')
    if S1P == 'early': emit(rest1)
    if S2P == 'early': emit(dma(2))
    job_setup(0)
    if S1P == 'mid': emit(rest1)
    if S2P == 'mid': emit(dma(2))
    job_setup(1)
    srd(k, 68, 48, 896)
    k('s_mov_b32 s14, s38'); k('s_mov_b32 s15, s35')
    V.release(vRc)
    def job_ev(first=False):
        L = []
        for i in range(1 if first else 2):
            J = JS[i]; R = J['srd']; lm = ('s43', 's32')[i]
            L += [[(f's_mov_b32 m0, {lm}', None)], (f'buffer_load_dwordx4 {vR[i]}, s[{R}:{R + 3}], {J["off"]} offen lds', 'job')]
            cmp_ = ('s_cmp_lt_u32 s38, 3', 's_cmp_ge_u32 s38, 2')[i]
            L += [[(cmp_, None), (f's_cselect_b32 s33, {J["step"]}, 0', None)], [(f's_add_u32 {J["off"]}, {J["off"]}, s33', None)]]
            L += [[(cmp_, None), ('s_cselect_b32 s33, 0x400, 0', None)], [(f's_add_u32 {lm}, {lm}, s33', None)]]
        return L
    def job_out(i, F):
        L = []
        for nt in range(4):
            L += [(f'ds_read_b64_tr_b16 {F[nt].sub(2 * j, 2)}, {rR[nt]} offset:{i * 4096 + j * 2048}', None) for j in range(2)]
        S = [(f'buffer_store_dwordx4 {F[nt]}, {so}, s[28:31], s{JS[i]["dst"] + nt} offen sc1', None) for nt in range(4)]
        return L, S
    k(f's_lshl_b32 s35, {sw}, 11')
    k(f's_lshl_b32 s48, {sw}, 10')
    k(f's_add_u32 s48, s48, 8192')
    k('s_mov_b32 s49, 0')
    def dmaq(slot, first=False):
        tg = f'dma{slot}'
        L = []
        if first: L += [[('s_mov_b32 s36, 0', None), ('s_mov_b32 s37, 0', None)]]
        if PAIRQ:
            if slot % 2: L += apair(slot - 1, dA2, 's35', 's[56:59]')
            L += [[(f's_add_u32 m0, s48, {hex(slot * 16384)}', None)]]
        else:
            L += [[(f's_add_u32 m0, s35, {hex(slot * 16384)}', None)]]
            L += [[(f'buffer_load_dwordx4 {dA2[i]}, s[56:59], s36 offen offset:{i * 1024} lds', tg)] for i in range(2)]
            L += [[(f's_add_u32 m0, s48, {hex(slot * 16384)}', None), ('s_add_u32 s36, s36, 64', None)]]
        L += [[(f'buffer_load_dwordx4 {dX}, s[52:55], s49 offen lds', tg)]]
        L += [[(f's_add_u32 m0, s34, {hex(WB + slot * 16384)}', None), ('s_add_u32 s49, s49, s47', None)]]
        L += [[(f'buffer_load_dwordx4 {dW[i]}, s[60:63], s37 offen offset:{i * 1024} lds', tg)] for i in range(4)]
        L += [[(f's_add_u32 s37, s37, {hex(32 * 8192)}', None)]]
        return L
    V.release(g, r)
    FA = [[V(4) for _ in range(8)] for _ in range(2)]
    FW = [[V(4) for _ in range(8)] for _ in range(2)]
    QV = [V(4) for _ in range(8)]
    aacc = [[V(4) for _ in range(2)] for _ in range(2)]
    cs3 = V(4)
    T = V(8, 4); PK = [V(4), V(4)]
    WS = [[aacc[0][0], aacc[0][1], aacc[1][0], aacc[1][1], T.sub(0, 4), T.sub(4, 4), PK[0], PK[1]], FW[0], QV, FW[1]]
    def wrd(slot, dst, i):
        return [(f'ds_read_b64_tr_b16 {dst[i].sub(2 * j, 2)}, {rW[i]} offset:{slot * 16384 + (4 * j) * 512}', None) for j in range(2)]
    def wreads(slot, fs, i): return wrd(slot, FW[fs], i)
    def reads(r, w=True):
        L = []
        for i in range(8):
            L.append((f'ds_read_b128 {FA[r % 2][i]}, {rAk[i % 2]} offset:{(r % 4) * 16384 + (i // 2) * 2048}', None))
            if w: L += wrd(r % 4, WS[(r + 1) % 4], i)
        return L
    def readsq(slot, fs, s):
        b = slot * 16384
        L = []
        for i in range(2): L.append((f'ds_read_b128 {FA[fs][i]}, {rA2[0]} offset:{b + i * 1024}', None))
        for nt in range(2):
            L += [(f'ds_read_b64_tr_b16 {FA[fs][4 + nt].sub(2 * j, 2)}, {r1[nt]} offset:{b + 8192 + j * 256}', None) for j in range(2)]
        L.append((f'ds_read_b128 {FA[fs][7]}, {rG} offset:{s * 64}', None))
        L += [(f'ds_read_b64_tr_b16 {FA[fs][6].sub(2 * j, 2)}, {r3} offset:{b + 10240 + j * 128}', None) for j in range(2)]
        for i in range(2): L.append((f'ds_read_b128 {FA[fs][2 + i]}, {rA2[1]} offset:{b + i * 1024}', None))
        for i in range(8): L += wreads(slot, fs, i)
        return L
    def acc(tt, nt, isV): return Reg('a', ((((tt >> 1) * 8 + nt) * 2 + (tt & 1)) if isV else (tt * 8 + nt)) * 4, 4)
    def zig(rows, ncol):
        seq = []
        for ob in range(len(rows) // 2):
            cols = list(range(ncol)) if ob % 2 == 0 else list(range(ncol - 1, -1, -1))
            for n, c in enumerate(cols): seq += [(rows[2 * ob + (n % 2)], c), (rows[2 * ob + 1 - (n % 2)], c)]
        return seq
    def mfmas(t, isV, zero=False, chain=True):
        L = []
        if chain: seq = [(i, nt, (0, 1) if n % 2 == 0 else (1, 0)) for n, (i, nt) in enumerate(zig([0, 1, 2, 3], 8))]
        else: seq = [(i, nt, (kk,)) for rp_ in ([0, 1], [2, 3]) for kk in range(2) for i, nt in zig(rp_, 8)]
        for i, nt, ks_ in seq:
            tt = (t % 2) * 4 + i
            for m_, kk in enumerate(ks_):
                fa = FA[t % 2][i * 2 + kk]; fw = WS[(t // 2 * 2 + kk) % 4][nt]
                a, b = (fa, fw) if isV else (fw, fa)
                L.append(f'{MF} {acc(tt, nt, isV)}, {a}, {b}, {0 if zero and m_ == 0 else acc(tt, nt, isV)}')
        return L
    pst(55)
    if not opt.get('pflate', 1):
        for st in range(opt.get('n0', 0), 2): emit(dma(st))
    if S1P == 'pre': emit(rest1)
    if S2P == 'pre': emit(dma(2))
    if S3P == 'pre': emit(dma(3))
    pst(56)
    BAL = opt.get('bal', 0)
    k.wait('dma0')
    if BAL:
        k('s_memtime s[32:33]'); k('s_memrealtime s[40:41]'); k('s_waitcnt lgkmcnt(0)')
        k(f'v_mov_b32 {cs1[0][0]}, s32'); k(f'v_mov_b32 {cs1[0][1]}, s40')
    k('s_barrier')
    if stamp: st_at(k, 0)
    for i in range(8): emit(wrd(3, WS[0], i))
    emit(reads(0))
    if S2P == 'post': emit(dma(2))
    if S3P == 'post': emit(dma(3))
    ZWG = opt.get('zwg', 56)
    def zero_flags():
        lz = k.newlabel('z')
        k(f's_xor_b32 s32, s2, {ZWG}'); k(f's_or_b32 s32, s32, {sw}')
        k(f's_cbranch_scc1 {lz}')
        k(f'v_mov_b32 {t0}, 0')
        k(f'v_lshlrev_b32 {t1}, 7, {lane}')
        for i in range(4):
            k(f's_mov_b32 s32, {hex(WS_FL + i * 8192)}')
            k(f'buffer_store_dword {t0}, {t1}, s[28:31], s32 offen sc1')
        for j in range(4): k(f'v_mov_b32 {cs1[1][j]}, 0')
        k(f's_mov_b32 s32, {hex(WS_FL + FL_R * 128)}')
        for o in (0, 1024, 2048): k(f'buffer_store_dwordx4 {cs1[1]}, {so}, s[28:31], s32 offen offset:{o} sc1')
        k(f'v_min_u32 {t1}, 56, {lane}')
        k(f'v_mul_u32_u24 {t1}, {HPL}, {t1}')
        k(f's_mov_b32 s32, {hex(WS_H)}')
        for o in (0, 16, 96, 112): k(f'buffer_store_dwordx4 {cs1[1]}, {t1}, s[28:31], s32 offen offset:{o} sc1')
        k.label(lz)
    def raise_dbg():
        lz = k.newlabel('z')
        k(f's_xor_b32 s32, s2, {ZWG}'); k(f's_or_b32 s32, s32, {sw}')
        k(f's_cbranch_scc1 {lz}')
        k(f'v_mov_b32 {t0}, 1'); k(f'v_mov_b32 {t1}, 0')
        k('s_waitcnt vmcnt(0)')
        k(f'global_store_dword {t1}, {t0}, s[50:51] sc1')
        k.label(lz)
    sK = ['s38', 's39']; sEnd, sJump, sD, sSp = 's3', 's76', 's77', 's78'
    sCnt, sRem, sIdle, sPf, sPar, sPend, sPo = 's33', 's34', 's35', 's36', 's37', 's52', 's53'
    sMode, sDiag, sNext, sQb, sU, spair, styp = 's97', 's98', 's99', 's100', 's101', 's16', swh
    vFa, vFe, vF1, vdma1 = dA[0], dA[1], dW[0], dA[3]
    sUA, sAH = 's72', 's50'
    def S(*xs): return [(x, None) for x in xs]
    def split_loads(items, n, m0=False):
        c = 0; lastm = None
        for i, it in enumerate(items):
            g_ = it if isinstance(it, list) else [it]
            if klass(g_[0][0]) == 'm':
                if c == n: return items[:i], ([[lastm]] if m0 and lastm else []) + items[i:]
                c += 1
            else:
                for x in g_:
                    if ' m0,' in x[0]: lastm = x
        return items, []
    qn = [32]
    def qst():
        if opt.get('its'):
            k('s_memtime s[80:81]'); k('s_waitcnt lgkmcnt(0)'); k('s_sub_u32 s80, s80, s96')
            k(f'v_writelane_b32 v255, s80, {qn[0]}'); qn[0] += 1
    def srd_items(r, base, nbytes, add=None):
        if add is None: L = [S(f's_mov_b32 s{r}, s{base}'), S(f's_and_b32 s{r + 1}, s{base + 1}, 0xffff')]
        else: L = [S(f's_add_u32 s{r}, s{base}, {add}', f's_addc_u32 s{r + 1}, s{base + 1}, 0'), S(f's_and_b32 s{r + 1}, s{r + 1}, 0xffff')]
        return L + [S(f's_mov_b32 s{r + 2}, {hex(nbytes)}'), S(f's_mov_b32 s{r + 3}, 0x20000')]
    def setup2(isV):
        L = [S(f's_lshl_b32 s69, {shead}, 20')]
        L += [S(f's_mul_i32 s79, {shead}, {WHS}')]
        L += srd_items(8, 74, 0) + [S(f's_add_u32 s10, s79, {hex(WJ + 15 * 16384)}')]
        L += srd_items(12, 74, 0, hex(WS_V)) + [S(f's_add_u32 s14, s79, {hex(WJ + 13 * 16384 + 2048)}')]
        L += srd_items(20, 74, 256 * 128, hex(WS_FL))
        L += srd_items(24, 50, 256)
        L += [S(f's_mov_b32 s72, {hex(UALO)}'), S(f's_mov_b32 s73, {hex(UAHI)}')]
        if isV: L += [S(f's_sub_u32 s79, 7, {srt}'), S('s_lshl_b32 s79, s79, 3')]
        else: L += [S(f's_lshl_b32 s79, {srt}, 3')]
        L += [S('s_lshr_b64 s[72:73], s[72:73], s79'), S('s_and_b32 s72, s72, 0xff')]
        L += [S('s_add_u32 s70, s69, 0x4000'), S('s_add_u32 s71, s69, 0x8000'), S('s_lshr_b32 s73, s79, 3')]
        L += [S(f's_add_u32 s51, {shead}, {FL_T}'), S('s_lshl_b32 s51, s51, 7'), S(f's_cmp_eq_u32 {sw}, 0', 's_cselect_b32 s79, s51, 0x100000')]
        L += [(f'v_add_u32 {vdma1}, s34, {so}', None), (f'v_mov_b32 {vFa}, s79', None), (f'v_mov_b32 {vFe}, {2 * NEARLY}', None)]
        return L
    def kdma(sreg, v): return [(f'buffer_load_dwordx4 {v}, s[8:11], {sreg} offen offset:{i * 1024}{SC1} lds', None) for i in range(4)]
    def vdma_(sreg, v): return [(f'buffer_load_dwordx4 {v}, s[12:15], {sreg} offen offset:{i * 1024}{SC1} lds', None) for i in range(4)]
    def poll(va_, ve_, vv_, srd_='s[20:23]', w0=False, off=0):
        lp_, go_ = k.newlabel('poll'), k.newlabel('go')
        if w0:
            k(f's_cmp_lg_u32 {sw}, 0'); k(f's_cbranch_scc1 {go_}')
        k(f'v_cmp_lt_u32 vcc, {vv_}, {ve_}')
        k(f's_cbranch_vccz {go_}')
        k('s_mov_b32 s43, 0')
        k.label(lp_)
        k(f's_sleep {opt.get("psleep", 3)}')
        k(f'buffer_load_dword {vv_}, {va_}, {srd_}, 0 offen offset:{off} sc1')
        k(f'v_cmp_lt_u32 vcc, {vv_}, {ve_}')
        k(f's_cbranch_vccz {go_}')
        k('s_add_u32 s43, s43, 1')
        k('s_cmp_lt_u32 s43, 0x40000')
        k(f's_cbranch_scc1 {lp_}')
        k.label(go_)
    def signal(soff, tmp):
        ls_ = k.newlabel('sig')
        k(f's_cmp_lg_u32 {sw}, 0'); k(f's_cbranch_scc1 {ls_}')
        k(f'v_mov_b32 {tmp}, 1')
        k('s_mov_b64 exec, 1')
        k(f'buffer_atomic_add {tmp}, off, s[20:23], {soff} sc1')
        k('s_mov_b64 exec, -1')
        k.label(ls_)

    vPk = dA[2]; vPk2 = rAk[1]
    NTOP = opt.get('ntop', 0)
    def mkdrain():
        kvm = opt.get('kvmod', ' sc1')
        where = lambda n: (vPk, n * 1024) if n < 8 else (vPk2, (n - 7) * 16384 + 12288)
        base = lambda n: ('s64', 's65', 's66')[n // 4]
        def unpark(ns):
            L = []
            for i in range(0, len(ns), 2):
                for n in ns[i:i + 2]: L.append((f'ds_read_b128 {T.sub((n % 2) * 4, 4)}, {where(n)[0]} offset:{where(n)[1]}', None))
                L += [('v_nop', None)] * 2
                for n in ns[i:i + 2]: L.append((f'buffer_store_dwordx4 {T.sub((n % 2) * 4, 4)}, {so}, s[28:31], {base(n)} offen offset:{(n % 4) * 1024}' + kvm, None))
            return L
        drain = []
        for n in range(32):
            o, u = divmod(n, 4)
            P = PK[n % 2]
            for j in range(8): drain.append((f'v_accvgpr_read_b32 {T[j]}, a{8 * n + j}', None))
            for j in range(4): drain.append((f'v_cvt_pk_bf16_f32 {P[j]}, {T[2 * j]}, {T[2 * j + 1]}', None))
            if n < 8 + NTOP: drain.append((f'ds_write_b128 {where(n)[0]}, {P} offset:{where(n)[1]}', None))
            else: drain.append((f'buffer_store_dwordx4 {P}, {so}, s[28:31], s40 offen offset:{u * 1024}' + kvm, None))
            if u == 3:
                inc = f's_add_u32 s40, s40, s{41 + (o & 1)}'
                drain.append(S(f's_mov_b32 s{64 + o}, s40', inc) if o < 3 else (inc, None))
            if n == 12: drain += unpark(list(range(8, 8 + NTOP)))
        return drain + unpark(list(range(8)))
    def store_gate(items, nst):
        c = 0
        for i, it in enumerate(items):
            if not isinstance(it, list) and it[0].startswith('buffer_store'):
                if c == nst: return i
                c += 1
        return len(items)
    PER4 = 4 * 13 + 1
    rs_ = opt.get('rstride', 2); ds_ = opt.get('dstride', 7)
    k(f's_cmp_eq_u32 {swh}, 0')
    k(f's_cbranch_scc0 {name}_V')
    left_after = None
    for isV in (0, 1):
        if isV: k.label(f'{name}_V')
        k(f's_lshl_b32 s40, {shead}, 20')
        if isV: k(f's_add_u32 s40, s40, {hex(WS_V)}')
        k(f's_lshl_b32 s41, {srt}, 17'); k('s_add_u32 s40, s40, s41')
        k('s_lshl_b32 s41, s45, 16'); k('s_add_u32 s40, s40, s41')
        k(f's_lshl_b32 s41, s46, {13 if isV else 12}'); k('s_add_u32 s40, s40, s41')
        k(f's_mov_b32 s41, {4096 if isV else 8192}'); k(f's_mov_b32 s42, {12288 if isV else 8192}')
        if not warm: PFI = []
        def kvstep(s, d, more=[], wait=None, zero=False, pre=None, rd=None):
            if opt.get('its'):
                k('s_memtime s[80:81]'); k('s_waitcnt lgkmcnt(0)'); k('s_sub_u32 s80, s80, s96')
                k('s_mov_b32 s81, m0'); k('s_mov_b32 m0, s95'); k('s_nop 1'); k('v_writelane_b32 v255, s80, m0'); k('s_add_u32 s95, s95, 1'); k('s_mov_b32 m0, s81')
            k('s_waitcnt lgkmcnt(0)')
            k.wait(f'dma{(s + 1) % 4}')
            if wait: k.wait(wait)
            if pre: pre()
            k('s_barrier')
            st = [d, dict(items=reads(s + 1), stride=rs_)] + more
            lst, left = pack(mfmas(s, isV, zero), st)
            assert left == 0, left
            emit(lst)
        pfg = opt.get('pfgap', 35)
        def iteration(sched, first=[], ev=[], more={}, wait={}, zero=False, pre={}, last=[], dma=dma, rd={}):
            pend = list(first)
            for s in range(4):
                n, st0, str_ = sched[s]
                now, pend = split_loads(pend + dma(s) + (last if s == 3 else []), n, True)
                mo = list(more.get(s, []))
                if s in ev: mo.append(ev[s])
                kvstep(s, dict(items=now, start=st0, stride=str_), mo, wait.get(s), zero and s < 2, pre.get(s))
            assert not pend
        if opt.get('its'): k('s_mov_b32 s95, 0')
        JF = [cs3, cs1[1], cs1[0]]
        def jobst(n0):
            rd_ = []; st_ = []
            for n in (n0, n0 + 1):
                r_, s_ = job_out(n // 4, [JF[n % 2]] * 4)
                rd_ += r_[2 * (n % 4):2 * (n % 4) + 2]; st_.append(s_[n % 4])
            return [dict(items=st_, start=24, stride=28), dict(items=rd_, start=3, stride=2)]
        lp = f'{name}_loop{isV}'
        dml = lambda st: adma(st) + wdma(st)
        ps = opt.get('psched', [(8, 1, 3), (0, 1, 1), (12, 12, 4), (12, 1, 5)])
        pg = opt.get('pfgap', 27)
        k('s_mov_b32 s38, 0'); k('s_mov_b32 s43, s97')
        f0 = (dma(2) if S2P == 'loop' else []) + (dma(3) if S3P == 'loop' else []) + wdma(3)
        iteration(opt.get('sched0', [(16, 1, 3)] + ps[1:]), first=f0, ev={opt.get('ev0s', 0): dict(items=list(PFI) + job_ev(True), start=opt.get('ev0g', 52), stride=2)}, zero=True, pre={1: zero_flags}, dma=dml)
        k('s_mov_b32 s38, 1'); k('s_add_u32 s32, s97, 4096')
        k.raw('.p2align 6')
        k.label(lp)
        iteration(ps, ev={0: dict(items=list(PFI) + job_ev(), start=pg, stride=2)}, dma=dml)
        k('s_add_u32 s38, s38, 1')
        k('s_cmp_lt_u32 s38, 6')
        k(f's_cbranch_scc1 {lp}')
        dml6 = lambda st: dml(st) if st < 3 else adma(3)
        iteration(ps[:2] + [(10, 12, 5), (10, 1, 6)], ev={0: dict(items=list(PFI), start=pg, stride=2)},
                  more={2: jobst(0), 3: jobst(2)}, wait={2: 'job'}, pre={2: raise_dbg}, dma=dml6)
        drain = mkdrain()
        dstream = dict(items=drain, keep=True)
        qn[0] = 28
        for s in range(4):
            qst()
            k('s_waitcnt lgkmcnt(0)')
            k.wait(f'dma{(s + 1) % 4}')
            if s == 3: k.wait('gate')
            k('s_barrier')
            if s == 0:
                gl = [S(f's_mov_b32 m0, {hex(GL)}'), (f'buffer_load_dwordx4 {so}, s[68:71], 0 offen lds', 'gate')]
                st = [dict(items=dmaq(s, first=True) + gl, start=1, stride=8), dict(items=[(f'ds_write_b128 {so}, {ones} offset:{GL + 1024}', None)], start=3)]
            else: st = [dict(items=dmaq(s), start=1, stride=6)]
            if s < 2: st += jobst(4 + 2 * s)
            if s < 3: st.append(dict(items=reads(s + 1, w=(s < 2)), stride=rs_))
            if s == 1: st.append(dict(items=srd_items(4, 14, 448 * 896) + setup2(isV) + [(f'v_add_u32 {vPk}, s97, {so}', None)]))
            if s == 3:
                k(f's_lshl_b32 s32, {sw}, 10'); k(f'v_add_u32 {vPk2}, s32, {so}')
                st.append(dict(items=readsq(0, 0, 0), stride=rs_))
            if s >= 2:
                done_ = len(mkdrain()) - len(drain)
                need = 3 * PER4 + 12
                if s == 2: dstream['gate'] = lambda gi, p: gi >= 35 and p < 2 * PER4
                else: dstream['gate'] = lambda gi, p: (gi >= 3 or done_ + p < 2 * PER4) and done_ + p < need
                st.insert(1, dstream)
            lst, left = pack(mfmas(s, isV, chain=s < opt.get('nochain', 4)), st, v2=opt.get('lv2', True))
            assert left == 0, left
            emit(lst)
        del dstream['gate']
        assert left_after in (None, len(drain)); left_after = len(drain)
        if not isV: k(f's_branch {name}_Q')
    k.label(f'{name}_Q')
    if stamp: st_at(k, 1)
    Aq = lambda i: Reg('a', 4 * i, 4)
    Qacc = [[Aq(i) for i in range(8)], [Aq(8 + i) for i in range(8)], [Aq(16 + i) for i in range(8)], QV]
    XX = [Aq(24), Aq(25)]
    done0 = len(mkdrain()) - len(drain)
    vD = rA
    SC = FW[0][0].sub(0, 2)
    Qf = lambda qt, ds: Reg('a', (qt * 8 + ds) * 4, 4)
    QP = lambda tt, u: FA[tt >> 1][(tt & 1) * 4 + u]
    drain0 = list(drain)
    vFb, vFv, vRk = dW[1], dW[2], dW[3]
    def split_setup():
        k(f's_mov_b32 {sAH}, {shead}')
        if BAL:
            k(f'v_mov_b32 {t1}, 1')
            poll(vFb, t1, vFv)
            k(f'v_mov_b32 {vRk}, 0')
            for r in range(1, 16):
                tt_ = (t0, t1)[r % 2]
                k(f'v_mov_b32_dpp {tt_}, {vFv} row_ror:{r} row_mask:0xf bank_mask:0xf')
                k(f'v_cmp_lt_u32 vcc, {tt_}, {vFv}')
                k(f'v_addc_co_u32 {vRk}, vcc, 0, {vRk}, vcc')
            k(f'v_readlane_b32 s32, {vRk}, {shead}')
            k(f'v_readlane_b32 s33, {vFv}, {shead}')
            k('s_sub_u32 s32, 15, s32')
            k(f'v_cmp_eq_u32 vcc, s32, {vRk}')
            k('s_ff1_i32_b32 s66, vcc_lo')
            k('s_and_b32 s66, s66, 15')
            k(f'v_readlane_b32 s32, {vFv}, s66')
            k('s_sub_i32 s32, s32, s33')
            k(f's_cmp_eq_u32 {swh}, 0')
            k(f's_cselect_b32 {sAH}, s66, {shead}')
            k('s_cselect_b32 s33, -1, 1'); k('s_mul_i32 s32, s32, s33')
            k('s_abs_i32 s33, s32')
            k('s_lshr_b32 s33, s33, 8'); k(f's_mul_i32 s33, s33, {opt.get("balk", 44)}'); k('s_add_u32 s33, s33, 0x8000'); k('s_lshr_b32 s33, s33, 16')
            k(f's_min_u32 s33, s33, {opt.get("balmax", 3)}')
            k('s_cmp_lt_i32 s32, 0'); k('s_cselect_b32 s32, 1, -1'); k('s_mul_i32 s33, s33, s32')
            k('s_cmp_eq_u32 s73, 7'); k('s_cselect_b32 s33, 0, s33')
            k(f's_add_u32 {sUA}, {sUA}, s33')
            k('s_lshl_b32 s32, s73, 2'); k('s_sub_u32 s32, 60, s32'); k('s_max_u32 s32, s32, 36'); k(f's_min_u32 {sUA}, {sUA}, s32')
        k(f's_cmp_eq_u32 {srb}, 7'); k(f's_cselect_b32 s32, 32, {sUA}')
        k(f's_and_b32 {sSp}, s32, 1')
        k(f's_lshl_b32 {sEnd}, s32, 14')
        k(f's_sub_u32 {sJump}, s10, {15 * 16384}')
        l2_ = k.newlabel('sp')
        k(f's_cmp_ge_u32 {srb}, 7'); k(f's_cbranch_scc1 {l2_}')
        k(f's_xor_b32 {sSp}, {sSp}, 1')
        k(f's_lshl_b32 {sJump}, {sAH}, 20'); k(f's_add_u32 {sJump}, {sJump}, {sEnd}')
        k(f's_lshl_b32 {sEnd}, {srb}, 2'); k(f's_add_u32 {sEnd}, {sEnd}, 5'); k(f's_lshl_b32 {sEnd}, {sEnd}, 14')
        k.label(l2_)
        k(f's_add_u32 {sEnd}, {sEnd}, s69')
        k(f's_lshl_b32 s68, {sSp}, 15'); k('s_add_u32 s68, s68, s34')
        k(f's_cmp_eq_u32 {sSp}, 0')
        k(f's_cselect_b32 {sK[1]}, s70, s71'); k(f's_cselect_b32 {sK[0]}, s71, s70'); k(f's_cselect_b32 {sD}, 0x10000, 0')
        k(f's_add_u32 {sD}, {sD}, s34')
    lQe, lQj = k.newlabel('qe'), k.newlabel('qj')
    k(f's_cmp_lt_u32 {srt}, {NEARLY}'); k(f's_cbranch_scc1 {lQe}')
    for early in (0, 1):
        if early: k.label(lQe)
        drain = list(drain0); dstream = dict(items=drain, keep=True)
        qn[0] = 32
        QST = opt.get('qste', [0, 4, 4, 4, 4, 4, 4, 4, 4, 0, 0, 0, 0, 0]) if early else opt.get('qst', [0, 1, 1, 1, 1, 1, 1, 1, 1, 1, 3, 3, 3, 0])
        SIG = opt.get('sigstep', 2) if early else 10
        if early:
            k(f'buffer_load_dword {vD}, off, s[24:27], 0 sc1')
            if BAL:
                vFq = dX if False else t3
                k('s_memtime s[32:33]'); k('s_memrealtime s[66:67]'); k('s_waitcnt lgkmcnt(0)')
                k(f'v_sub_u32 {t0}, s32, {cs1[0][0]}'); k(f'v_sub_u32 {t1}, s66, {cs1[0][1]}')
                k(f'v_cvt_f32_u32 {t0}, {t0}'); k(f'v_cvt_f32_u32 {t1}, {t1}')
                k(f'v_rcp_f32 {t1}, {t1}')
                k(f'v_mul_f32 {t0}, 0x47800000, {t0}')
                k(f'v_mul_f32 {t0}, {t0}, {t1}')
                k(f'v_cvt_u32_f32 {t0}, {t0}')
                k(f'v_min_u32 {t0}, 0x7ffffff, {t0}'); k(f'v_max_u32 {t0}, 1, {t0}')
                k(f'v_lshl_add_u32 {vFq}, {t0}, 4, {shead}')
            emit(drain); del drain[:]
        first = [S('s_mov_b32 m0, s68')] + kdma('s69', vdma1) + [S('s_add_u32 m0, s68, 0x8000')] + kdma('s70', vdma1)
        first += [S('s_add_u32 m0, s68, 0x14000')] + vdma_('s69', vdma1) + [S('s_add_u32 m0, s68, 0x10000')] + kdma('s71', vdma1)
        for s in range(14):
            fs = s % 2
            C = lambda r_: '0' if s == 0 else str(r_)
            M = []
            for rt in range(2):
                for nt in range(2): M.append(f'{MF} {aacc[rt][nt]}, {FA[fs][4 + nt]}, {FA[fs][rt]}, {C(aacc[rt][nt])}')
            for nt in range(2): M.append(f'{MF} {cs1[nt]}, {FA[fs][4 + nt]}, {ones}, {C(cs1[nt])}')
            for rt in range(2): M.append(f'{MF} {rs[rt]}, {FA[fs][7]}, {FA[fs][rt]}, {C(rs[rt])}')
            M.append(f'{MF} {cs3}, {FA[fs][6]}, {ones}, {C(cs3)}')
            if s == 0 or not opt.get('holda', 1): qo = [(tt, nt) for i, tt in enumerate((3, 0, 1, 2)) for nt in (range(8) if i % 2 == 0 else range(7, -1, -1))]
            elif opt.get('zig', 1): qo = zig([3, 2, 0, 1], 8)
            else: qo = [(tt, nt) for nt in range(8) for tt in ((0, 1, 2, 3) if nt % 2 == 0 else (3, 2, 1, 0))]
            for tt, nt in qo: M.append(f'{MF} {Qacc[tt][nt]}, {FW[fs][nt]}, {FA[fs][tt]}, {C(Qacc[tt][nt])}')
            for rt in range(2): M.append(f'{MF} {XX[rt]}, {FA[fs][rt]}, {FA[fs][rt]}, {C(XX[rt])}')
            qst()
            k('s_waitcnt lgkmcnt(0)')
            st = []
            if s == SIG:
                if early:
                    emit(drain); del drain[:]
                    k('s_waitcnt vmcnt(0)')
                k(f'v_mov_b32 {t1}, 1'); k(f'v_mov_b32 {t2}, 0')
                poll(t2, t1, vD, 's[24:27]', w0=True)
            if s + 1 < 14: k.wait(f'dma{(s + 1) % 4}')
            if s == 13:
                poll(vFa, vFe, vF1, w0=True)
                split_setup()
            k('s_barrier')
            if s == SIG and early:
                signal('s51', t0)
                if BAL:
                    lf_ = k.newlabel('f')
                    k(f's_or_b32 s32, {srb}, {sw}'); k(f's_cbranch_scc1 {lf_}')
                    k(f's_lshl_b32 s32, {shead}, 2'); k(f's_add_u32 s32, s32, {FL_F * 128}')
                    k('s_mov_b64 exec, 1')
                    k(f'buffer_store_dword {t3}, off, s[20:23], s32 sc1')
                    k('s_mov_b64 exec, -1')
                    k.label(lf_)
            if s == 11 and BAL:
                st.append(dict(items=[(f'v_and_b32 {vFb}, 15, {lane}', None), (f'v_lshlrev_b32 {vFb}, 2, {vFb}', None), (f'v_add_u32 {vFb}, {FL_F * 128}, {vFb}', None), (f'buffer_load_dword {vFv}, {vFb}, s[20:23], 0 offen sc1', None)]))
            if s + 4 < 14: st.append(dict(items=dmaq(s % 4), start=1, stride=(4 if s % 2 else 7) if PAIRQ else 5))
            if s + 1 < 14: st.append(dict(items=readsq((s + 1) % 4, 1 - fs, s + 1), stride=opt.get('rq', 1.25)))
            if s == 0:
                dstream['by'] = {17: PER4 - done0, 25: 2 * PER4 - done0, 33: 3 * PER4 - done0, 41: 3 * PER4 + 8 - done0}
            else:
                dstream.pop('by', None)
            lims = [store_gate(drain, n) for n in range(QST[s] + 1)]
            dstream['gate'] = lambda gi, p: p < lims[min(QST[s], 1 + gi * QST[s] // 40)]
            st.insert(1 if s + 4 < 14 else 0, dstream)
            if s == 5 and not early: st.append(dict(items=[(f'buffer_load_dword {vD}, off, s[24:27], 0 sc1', None)], start=30))
            if s == 10: st.insert(0, dict(items=[(f'buffer_load_dword {vF1}, {vFa}, s[20:23], 0 offen sc1', None)], start=0))
            if s == 13:
                now, first = split_loads(first, opt.get('nfirst', 8))
                st.insert(0, dict(items=now, start=1, stride=4))
            lst, left = pack(M, st)
            if opt.get('verbose'): print('Q step', s, 'overflow', left, 'drain left', len(drain))
            emit(lst)
        if stamp: st_at(k, 2)
        qst()
        k(f'v_mov_b32 {SC[0]}, {hex(f2u(LOG2E / 16))}'); k(f'v_mov_b32 {SC[1]}, {hex(f2u(LOG2E / 16))}')
        k(f's_xor_b32 s32, s46, 1'); k('s_lshl_b32 s32, s32, 13'); k('s_lshl_b32 s33, s45, 15'); k('s_add_u32 s32, s32, s33'); k('s_add_u32 s32, s32, 0x4000')
        k(f'v_add_u32 {t3}, s32, {so}')
        T2 = [FW[0][2], FW[0][4]]
        n = 0
        for tt in (3, 2, 0, 1):
            for u in range(4):
                if n == 10:
                    k('s_waitcnt lgkmcnt(0)')
                    k('s_barrier')
                if first and opt.get('thirdpos', 2) == 0:
                    now, first = split_loads(first, 1); emit(now)
                elif n % opt.get('edr', 3) == 0 and n >= opt.get('edr0', 0):
                    m_ = store_gate(drain, 1); emit(drain[:m_]); del drain[:m_]
                A0 = Qacc[tt][2 * u]; A1 = Qacc[tt][2 * u + 1]
                if tt != 3:
                    TT = Reg('v', T2[n % 2].i, 8)
                    for j in range(4): k(f'v_accvgpr_read_b32 {TT[j]}, {A0[j]}')
                    for j in range(4): k(f'v_accvgpr_read_b32 {TT[4 + j]}, {A1[j]}')
                    A0 = TT.sub(0, 4); A1 = TT.sub(4, 4)
                P = QP(tt, u)
                n += 1
                for X in (A0, A1):
                    for j in (0, 2): k(f'v_pk_mul_f32 {X.sub(j, 2)}, {X.sub(j, 2)}, {SC}')
                for j in range(4):
                    X = A0 if j < 2 else A1
                    k(f'v_cvt_pk_bf16_f32 {P[j]}, {X[(j % 2) * 2]}, {X[(j % 2) * 2 + 1]}')
                if tt >= 2: k(f'ds_write_b128 {t3}, {P} offset:{((tt & 1) * 4 + u) * 1024}')
        emit(drain)
        if not early: k(f's_branch {lQj}')
    k.label(lQj)
    if opt.get('thirdpos', 2) == 1: emit(first)
    k(f'v_xor_b32 {t3}, 0x2000, {t3}')
    lQd, l1 = k.newlabel('qd'), k.newlabel('wn')
    k('s_cmp_eq_u32 s46, 1'); k(f's_cbranch_scc1 {l1}')
    for wn in range(2):
        if wn: k.label(l1)
        for qt in range(2):
            for u in range(4): k(f'ds_read_b128 {Qf(qt, 4 * (1 - wn) + u)}, {t3} offset:{(qt * 4 + u) * 1024}')
        for qt in range(2):
            for u in range(4):
                for j in range(4): k(f'v_accvgpr_write_b32 {Qf(qt, 4 * wn + u)[j]}, {FA[0][qt * 4 + u][j]}')
        if wn == 0: k(f's_branch {lQd}')
    k.label(lQd)
    qst()
    k(f's_lshl_b32 s40, {shead}, 20')
    k(f's_add_u32 s40, s40, {hex(WS_Q)}')
    k(f's_lshl_b32 s41, {srb}, 16'); k('s_add_u32 s40, s40, s41')
    k('s_lshl_b32 s41, s45, 15'); k('s_add_u32 s40, s40, s41')
    k('s_lshl_b32 s41, s46, 12'); k('s_add_u32 s40, s40, s41')
    k(f's_cmp_le_u32 {srb}, 8'); k(f's_cselect_b32 s40, {hex(256 * MB)}, s40')
    k('s_lshl_b32 s41, s46, 14')
    k('s_add_u32 s36, s40, s41'); k('s_add_u32 s37, s36, 8192')
    k('s_xor_b32 s41, s41, 0x4000')
    k('s_add_u32 s48, s40, s41'); k('s_add_u32 s49, s48, 8192')
    qsto = [f'buffer_store_dwordx4 {QP(tt, u)}, {so}, s[28:31], s{(36, 37, 48, 49)[tt]} offen offset:{u * 1024}' + opt.get('qmod', ' sc1') for tt in range(4) for u in range(4)]
    for x in qsto[:4]: k(x)
    for rt in range(2):
        for j in range(4): k(f'v_accvgpr_read_b32 {T[rt * 4 + j]}, {XX[rt][j]}')
    l3 = k.newlabel('n3')
    k(f'v_lshrrev_b32 {t0}, 4, {lane}')
    k(f's_cmp_ge_u32 s2, 112'); k(f's_cbranch_scc1 {l3}')
    k(f's_cmp_lg_u32 {sw}, 0'); k(f's_cbranch_scc1 {l3}')
    k(f'v_and_b32 {t2}, 1, {lane}')
    k(f'v_lshlrev_b32 {t2}, 6, {t2}')
    k(f'v_lshl_add_u32 {t1}, {t0}, 4, {t2}')
    k('s_and_b32 s32, s2, 7'); k('s_mul_i32 s32, s32, 14'); k('s_lshr_b32 s33, s2, 3'); k('s_add_u32 s32, s32, s33')
    k(f's_lshl_b32 s32, s32, 7')
    k(f's_add_u32 s32, s32, {hex(WS_CS)}')
    k(f'buffer_store_dwordx4 {cs3}, {t1}, s[28:31], s32 offen sc1')
    k.label(l3)
    k(f'v_and_b32 {t1}, 15, {lane}')
    k(f's_lshl_b32 s32, {srb}, 7')
    k(f's_lshl_b32 s33, {sw}, 5'); k('s_add_u32 s32, s32, s33')
    k(f'v_add_u32 {t1}, s32, {t1}')
    GA = Reg('a', 128, 2)
    for rt in range(2): k(f'v_mul_f32 {rs[rt][1]}, {hex(f2u(-LOG2E))}, {rs[rt][1]}')
    for rt in range(2): k(f'v_exp_f32 {rs[rt][1]}, {rs[rt][1]}')
    for rt in range(2): k(f'v_add_f32 {rs[rt][1]}, 1.0, {rs[rt][1]}')
    for rt in range(2): k(f'v_rcp_f32 {rs[rt][1]}, {rs[rt][1]}')
    for rt in range(2): k(f'v_accvgpr_write_b32 {GA[rt]}, {rs[rt][1]}')
    lh, lfin1 = k.newlabel('h'), k.newlabel('fin')
    k(f's_cmp_lt_u32 {shead}, 14'); k(f's_cbranch_scc1 {lh}')
    for x in qsto[4:]: k(x)
    k(f's_cmp_lg_u32 {shead}, 14'); k(f's_cbranch_scc1 {lfin1}')
    k(f'v_lshlrev_b32 {t1}, 2, {t1}')
    k(f's_mov_b32 s32, {hex(WS_G)}')
    for rt in range(2): k(f'buffer_store_dword {rs[rt][1]}, {t1}, s[28:31], s32 offen offset:{rt * 64} sc1')
    k(f's_branch {lfin1}')
    k.label(lh)
    sq = [rW[1], rW[2]]
    k(f'v_lshlrev_b32 {t1}, 4, {t1}')
    k(f'v_bfe_u32 {t2}, {lane}, 4, 1')
    k(f'v_lshrrev_b32 {t3}, 5, {lane}')
    k(f'v_lshl_add_u32 {t2}, {t2}, 1, {t3}')
    k(f'v_mul_u32_u24 {t2}, {HPL}, {t2}')
    k(f'v_add_u32 {t1}, {t1}, {t2}')
    k(f'v_lshlrev_b32 {t0}, 2, {t0}')
    k(f'v_and_b32 {t2}, 15, {lane}')
    k(f'v_sub_u32 {t2}, {t2}, {t0}')
    for rt in range(2): k(f'v_mov_b32 {sq[rt]}, 0')
    for j in range(4):
        k(f'v_cmp_eq_u32 vcc, {j}, {t2}')
        for rt in range(2): k(f'v_cndmask_b32 {sq[rt]}, {sq[rt]}, {T[rt * 4 + j]}, vcc')
    for x in qsto[4:6]: k(x)
    xlane_sum(k, sq, [t0, t2])
    for x in qsto[6:8]: k(x)
    k(f's_mov_b32 s40, {hex(f2u(1.0 / 448))}')
    k(f's_mul_i32 s32, {shead}, {4 * HPL}')
    k(f's_add_u32 s32, s32, {hex(WS_H + 128)}')
    for rt in range(2):
        mu = rs[rt][0]; c0 = rs[rt][1]; c1 = rs[rt][2]; cq = rs[rt][3]
        k(f'v_mul_f32 {mu}, s40, {mu}')
        k(f'v_mul_f32 {t0}, {mu}, {mu}')
        k(f'v_fma_f32 {t0}, {sq[rt]}, s40, -{t0}')
        k(f'v_max_f32 {t0}, 0, {t0}')
        k(f'v_add_f32 {t0}, {hex(f2u(1e-5))}, {t0}')
        k(f'v_rsq_f32 {t2}, {t0}')
        k(f'v_sqrt_f32 {cq}, {t0}')
        k(f'v_mul_f32 {c0}, {hex(f2u(GK0))}, {t2}')
        k(f'v_mul_f32 {c1}, {t2}, {t2}')
        k(f'v_mul_f32 {c1}, {c1}, {t2}')
        k(f'v_mul_f32 {c1}, {hex(f2u(GK1))}, {c1}')
    xs = [aacc[rt][nt][j] for rt in range(2) for nt in range(2) for j in range(4)]
    TG = [FW[1][i // 4][i % 4] for i in range(16)]
    R_ = lambda i, j: rs[i // 8][j]
    hv = [f'v_fma_f32 {x}, -{R_(i, 0)}, {cs1[(i // 4) % 2][i % 4]}, {x}' for i, x in enumerate(xs)]
    hv += [f'v_mul_f32 {TG[i]}, {x}, {x}' for i, x in enumerate(xs)]
    hv += [f'v_fma_f32 {TG[i]}, {TG[i]}, {R_(i, 2)}, {R_(i, 1)}' for i, x in enumerate(xs)]
    hv += [f'v_mul_f32 {TG[i]}, {TG[i]}, {x}' for i, x in enumerate(xs)]
    hv += [f'v_exp_f32 {TG[i]}, {TG[i]}' for i, x in enumerate(xs)]
    hv += [f'v_fma_f32 {TG[i]}, {TG[i]}, {R_(i, 3)}, {R_(i, 3)}' for i, x in enumerate(xs)]
    hv += [f'v_rcp_f32 {TG[i]}, {TG[i]}' for i, x in enumerate(xs)]
    hv += [f'v_mul_f32 {x}, {x}, {TG[i]}' for i, x in enumerate(xs)]
    qq = qsto[8:]
    for i, x in enumerate(hv):
        if i % 10 == 0 and qq: k(qq.pop(0))
        k(x)
    for rt in range(2):
        p = T.sub(rt * 4, 4)
        for nt in range(2):
            k(f'v_cvt_pk_bf16_f32 {p[2 * nt]}, {aacc[rt][nt][0]}, {aacc[rt][nt][1]}')
            k(f'v_cvt_pk_bf16_f32 {p[2 * nt + 1]}, {aacc[rt][nt][2]}, {aacc[rt][nt][3]}')
    for rt in range(2):
        p = T.sub(rt * 4, 4)
        k(f'v_permlane16_swap_b32 {p[0]}, {p[2]}')
        k(f'v_permlane16_swap_b32 {p[1]}, {p[3]}')
    k.label(lfin1)
    qst()
    if opt.get('thirdpos', 2) == 2: emit(first)
    lnh = k.newlabel('nh')
    k(f's_cmp_ge_u32 {shead}, 14'); k(f's_cbranch_scc1 {lnh}')
    for rt in range(2): k(f'buffer_store_dwordx4 {T.sub(rt * 4, 4)}, {t1}, s[28:31], s32 offen offset:{rt * 256} sc1')
    k.label(lnh)
    if stamp: st_at(k, 3)
    qst()
    if opt.get('its'):
        k('v_lshlrev_b32 v254, 2, v0'); k('s_lshl_b32 s80, s2, 10'); k(f's_add_u32 s80, s80, {hex(101 * MB)}')
        k('buffer_store_dword v255, v254, s[28:31], s80 offen')

    V = Alloc('v', 1, 128)
    O = lambda dt, qt: Reg('v', 128 + (dt * 2 + qt) * 4, 4)
    Kf = lambda kt, ds: Reg('a', 64 + (kt * 8 + ds) * 4, 4)
    Vf = lambda dt: Reg('a', 128 + dt * 4, 4)
    lane2 = V(); assert lane2.i == lane.i
    l16 = V(); vdma = V()
    big = V(64, 4)
    Sx = [[[big.sub(((b * 2 + kt) * 2 + qt) * 4, 4) for qt in range(2)] for kt in range(2)] for b in range(2)]
    P = [[big.sub(32 + (b * 2 + qt) * 4, 4) for qt in range(2)] for b in range(2)]
    NM = [[big.sub(48 + (kt * 2 + qt) * 4, 4) for qt in range(2)] for kt in range(2)]
    OX = V(28, 4)
    L = [OX.sub(20, 4), OX.sub(24, 4)]
    US = [[OX[8], OX[9]], [OX[10], OX[11]]]
    E = V(8, 4); T = V(8, 4)
    ML = V(4)
    rp = V(); chk = V(); msk = V(); vF = V()
    t0 = V(); t1 = V(); t2 = V(); t3 = V()
    G2 = V(2)
    vS = V()
    def ats():
        if opt.get('ats'):
            k('s_memtime s[80:81]'); k('s_waitcnt lgkmcnt(0)'); k('s_sub_u32 s80, s80, s96')
            k('s_mov_b32 m0, s95'); k('s_nop 1'); k(f'v_writelane_b32 {vS}, s80, m0'); k('s_add_u32 s95, s95, 1')
    if opt.get('ats'): k('s_mov_b32 s95, 0'); k(f'v_mov_b32 {vS}, 0')
    k('s_nop 1')
    k(f'v_lshlrev_b32 {l16}, 4, {lane}')
    k(f's_lshl_b32 s40, {sw}, 12')
    k(f'v_add_u32 {vdma}, s40, {l16}')
    k(f'v_mov_b32 {rp}, {l16}')
    for qt in range(2): k(f'v_accvgpr_read_b32 {G2[qt]}, {GA[qt]}')
    def qloads():
        Lq = [S(f's_lshl_b32 s54, {sAH}, 20', f's_sub_u32 s55, 15, {srb}'), S('s_lshl_b32 s55, s55, 16', 's_add_u32 s54, s54, s55'), S(f's_lshl_b32 s55, {sw}, 14', 's_add_u32 s54, s54, s55'),
              S(f's_add_u32 s54, s54, {hex(WS_Q)}')]
        for n in range(16):
            if n and n % 4 == 0: Lq.append(S('s_add_u32 s54, s54, 0x1000'))
            Lq.append((f'buffer_load_dwordx4 {Qf(n // 8, n % 8)}, {l16}, s[28:31], s54 offen offset:{(n % 4) * 1024}' + opt.get('qmod', ' sc1'), None))
        return Lq
    PH_LAST = 6
    def mix(valu, mem, every):
        mem = list(mem); n = 0
        for x in valu:
            k(x); n += 1
            if n % every == 0:
                while mem:
                    it = mem.pop(0); emit([it])
                    if not isinstance(it, list): break
        return mem
    def pair_line():
        k(f's_lshl_b32 s40, {shead}, 3'); k(f's_add_u32 s40, s40, {spair}'); k(f's_add_u32 s40, s40, {FL_P}'); k('s_lshl_b32 s40, s40, 7')
    def hall_regs():
        k(f'v_and_b32 {t0}, 15, {lane}')
        k(f'v_lshlrev_b32 {t0}, 7, {t0}')
        k(f'v_add_u32 {t0}, {FL_H * 128}, {t0}')
        k(f'v_mov_b32 {t1}, 16')
    CSL = XT + 28672
    def cs_dma():
        k(f's_lshl_b32 s41, {sw}, 10'); k(f's_add_u32 m0, s41, {hex(CSL)}')
        k(f's_mul_i32 s40, {shead}, 896'); k(f's_add_u32 s40, s40, {hex(WS_CS)}')
        k(f'buffer_load_dwordx4 {l16}, s[28:31], s40 offen sc1 lds', tag='cs')
    def kv_regs():
        assert NEARLY >= 2 or not BAL
        k(f's_lshl_b32 s40, {sAH}, 7')
        k(f'v_mov_b32 {t0}, s40'); k(f'v_mov_b32 {t1}, 16')
    def end_regs():
        k(f's_add_u32 s40, {srb}, {FL_X}'); k('s_lshl_b32 s40, s40, 7')
        k(f'v_mov_b32 {t0}, s40'); k(f'v_mov_b32 {t1}, 7')
    vW2 = OX[12]; vH = [OX[13], OX[14], OX[15]]; sW2, sCg = 's47', 's48'
    def w2_items(i0, base):
        L_ = [S(f's_lshl_b32 s54, {sCg}, 7')]
        if i0: L_.append(S(f's_add_u32 s54, s54, {i0 * 32 * 896}'))
        for i in range(7):
            L_.append(S(f's_add_u32 m0, {base}, {hex(i * 4096)}'))
            L_.append((f'buffer_load_dwordx4 {vW2}, s[4:7], s54 offen lds', 'w2'))
            if i < 6: L_.append(S(f's_add_u32 s54, s54, {32 * 896}'))
        return L_
    X = [[Reg('a', 192 + ((s % 8) * 2 + rt) * 4, 4) for s in range(14)] for rt in range(2)]
    XR = [[OX.sub(0, 4), OX.sub(4, 4)], [OX.sub(16, 4), T.sub(4, 4)]]
    bacc = [[Vf(8 + rt * 4 + nt) for nt in range(4)] for rt in range(2)]
    WF = [[Vf(i) for i in range(4)], [Vf(4 + i) for i in range(4)]]
    rd2 = [[E[h_ * 4 + i] for i in range(4)] for h_ in range(2)]
    def xl_items(s0, s1):
        L_ = [S(f's_mov_b32 s55, {hex(s0 * 4 * HPL)}')]
        for s in range(s0, s1):
            v, d = (vH[1], 0) if s == 3 else (vH[2], 0) if s == 10 else (vH[0], [16, 48, 0, 64][(4 * s) // 14])
            for rt in range(2): L_.append((f'buffer_load_dwordx4 {X[rt][s]}, {v}, s[60:63], s55 offen offset:{d + rt * 256} sc1', None))
            if s + 1 < s1: L_.append(S(f's_add_u32 s55, s55, {hex(4 * HPL)}'))
        return L_
    lB, lgo2, ltask = k.newlabel('B'), k.newlabel('go'), k.newlabel('task')
    sHev = sPo
    k(f's_mov_b32 {sPend}, 1')
    srd(k, 60, 74, 57 * HPL, add=hex(WS_H))
    k(f's_mov_b32 {sPf}, 0')
    k(f's_cmp_eq_u32 {swh}, 0')
    k(f's_cbranch_scc1 {lB}')
    k(f's_mov_b32 {sNext}, 0'); k(f's_mov_b32 {sU}, {sUA}'); k(f's_mov_b32 {sHev}, 1')
    k(f's_sub_u32 {spair}, 7, {srt}')
    k(f's_cmp_eq_u32 {spair}, 7')
    k(f's_cselect_b32 {sDiag}, 1, 0'); k(f's_cselect_b32 {sMode}, 0, 2')
    k(f's_sub_u32 {sCg}, {spair}, {opt.get("a0", 1)}')
    k(f's_cmp_lt_u32 {sCg}, 6'); k(f's_cbranch_scc1 {ltask}')
    k(f's_mov_b32 {sCg}, 7')
    k(f's_branch {lgo2}')
    k.label(lB)
    k(f's_mov_b32 {sDiag}, 1')
    k(f's_lshl_b32 {sU}, {srt}, 2'); k(f's_add_u32 {sU}, {sU}, 4')
    HT = opt.get('ht', 3 if opt.get('ev', 10) <= 10 else 4)
    assert opt.get('ev', 10) + 2 <= 4 * HT
    k(f's_cmp_ge_u32 {srt}, {HT}'); k(f's_cselect_b32 {sHev}, 1, 0')
    k(f's_cmp_eq_u32 {srt}, 7')
    k(f's_cselect_b32 {sMode}, 0, 1'); k(f's_cselect_b32 {sNext}, 0, 1'); k(f's_cselect_b32 {sCg}, 6, 7')
    k(f's_cbranch_scc0 {lgo2}')
    k.label(ltask)
    k(f'v_and_b32 {t0}, 15, {lane}')
    k(f's_lshl_b32 s40, {sw}, 5'); k(f's_lshl_b32 s41, {shead}, 7'); k('s_add_u32 s40, s40, s41')
    k(f'v_add_u32 {t0}, s40, {t0}')
    k(f'v_lshrrev_b32 {t1}, 4, {lane}')
    k(f'v_mul_u32_u24 {t2}, {HPL}, {t1}')
    k(f'v_lshl_add_u32 {t2}, {t0}, 4, {t2}')
    k(f'v_add_u32 {vH[0]}, 96, {t2}')
    k(f'v_lshrrev_b32 {t3}, 5, {lane}')
    k(f'v_lshl_add_u32 {vH[2]}, {t3}, 6, {vH[0]}')
    k(f'v_lshl_add_u32 {vH[1]}, {t3}, 5, {vH[0]}')
    k(f'v_add_u32 {vH[1]}, 16, {vH[1]}')
    k(f'v_mul_u32_u24 {t0}, 896, {t0}')
    k(f'v_lshl_add_u32 {t0}, {t3}, 4, {t0}')
    k(f'v_and_b32 {t1}, 1, {t1}')
    k(f'v_lshl_add_u32 {T[0]}, {t1}, 5, {t0}')
    k(f'v_lshrrev_b32 {t0}, 3, {lane}')
    k(f's_lshl_b32 s32, {sw}, 3')
    k(f'v_add_u32 {t0}, s32, {t0}')
    k(f'v_mul_u32_u24 {t0}, 896, {t0}')
    k(f's_lshl_b32 s32, s46, 1')
    k(f'v_or_b32 {t1}, s32, {t1}')
    k(f'v_bfe_u32 {t2}, {lane}, 1, 2')
    k(f'v_xor_b32 {t1}, {t1}, {t2}')
    k(f'v_lshl_add_u32 {t0}, {t1}, 5, {t0}')
    k(f'v_and_b32 {t2}, 1, {lane}')
    k(f'v_lshl_add_u32 {vW2}, {t2}, 4, {t0}')
    k.label(lgo2)
    def x1_pre1():
        k(f's_lshl_b32 s41, {sw}, 10'); k(f's_add_u32 s41, s41, {hex(XT)}')
        emit(w2_items(0, 's41'))
        k(f's_lshl_b32 s40, {sCg}, 7'); k(f's_add_u32 s41, s40, {16 * 896}')
        for rt in range(2):
            for p_ in range(2): k(f'buffer_load_dwordx4 {XR[rt][p_]}, {T[0]}, s[56:59], s{40 + rt} offen offset:{p_ * 64}')
    NXE = opt.get('nxe', 4)
    def x1_stage():
        if opt.get('bts'): ats()
        k.wait('w2')
        k('s_waitcnt lgkmcnt(0)')
        k('s_barrier')
        k(f's_cmp_eq_u32 {sPar}, 0'); k('s_cselect_b32 s41, 0x8000, 0')
        k(f's_and_b32 {sW2}, {sD}, 0x10000'); k(f's_add_u32 {sW2}, {sW2}, s41')
        k(f's_lshl_b32 s41, {sw}, 10'); k(f's_add_u32 s41, s41, {sW2}')
        av = [f'v_bfe_u32 {t0}, {lane}, 2, 2', f'v_lshrrev_b32 {t1}, 4, {lane}', f'v_lshl_add_u32 {t0}, {t1}, 3, {t0}', f'v_lshlrev_b32 {t0}, 7, {t0}',
              f'v_and_b32 {t1}, 3, {lane}', f'v_lshl_add_u32 {t0}, {t1}, 3, {t0}', f'v_bfe_u32 {t1}, {lane}, 3, 2']
        for nt in range(4):
            av += [f'v_xor_b32 {t2}, {nt}, {t1}', f'v_lshl_add_u32 {t2}, {t2}, 5, {t0}', f'v_add_u32 {rd2[0][nt]}, {hex(XT)}, {t2}', f'v_add_u32 {rd2[1][nt]}, {sW2}, {t2}']
        vm = mix(av, xl_items(NXE, NXE + 2) + w2_items(7, 's41') + xl_items(NXE + 2, 8), 5)
        rdb = lambda s: [(f'ds_read_b64_tr_b16 {WF[s % 2][nt].sub(2 * j, 2)}, {rd2[s // 7][nt]} offset:{(s % 7) * 4096 + j * 512}', None) for nt in range(4) for j in range(2)]
        emit(rdb(0))
        swaps = [(f'v_permlane16_swap_b32 {XR[rt][p_][j]}, {XR[rt][p_][2 + j]}', None) for rt in range(2) for p_ in range(2) for j in range(2)]
        for s in range(14):
            M = [f'{MF} {bacc[rt][nt]}, {WF[s % 2][nt]}, {X[rt][s]}, {"0" if s == 0 else bacc[rt][nt]}' for nt in range(4) for rt in range(2)]
            if s == 6:
                k.wait('w2'); k('s_barrier')
            if 1 <= s <= 6: vm += xl_items(s + 7, s + 8)
            now, vm = split_loads(vm, 3)
            emit(now)
            st = []
            if s + 1 < 14: st.append(dict(items=rdb(s + 1)))
            if s == 12: st.append(dict(items=swaps))
            lst, _ = pack(M, st); emit(lst)
        assert not vm
        if opt.get('bts'): ats()
        st4 = T.sub(0, 4); U4 = E.sub(0, 4); A4 = E.sub(4, 4)
        k(f'v_mov_b32 {t3}, 0x3f803f80')
        for j in range(4): k(f'v_mov_b32 {st4[j]}, 0')
        k(f's_lshl_b32 s40, {shead}, 3'); k(f's_lshl_b32 s41, {sw}, 1'); k('s_add_u32 s40, s40, s41')
        k(f's_mul_i32 s41, s40, 7'); k(f's_add_u32 s41, s41, {sCg}'); k('s_lshl_b32 s41, s41, 11')
        k(f's_add_u32 s41, s41, {hex(WS_X1)}')
        for rt in range(2):
            if rt: k(f's_add_u32 s41, s41, {14 * 1024}')
            for nt in range(4):
                for h in range(2):
                    xr = XR[rt][nt // 2][2 * (nt % 2) + h]
                    k(f'v_lshlrev_b32 {U4[2 * h]}, 16, {xr}')
                    k(f'v_and_b32 {U4[2 * h + 1]}, 0xffff0000, {xr}')
                for j in range(4): k(f'v_accvgpr_read_b32 {A4[j]}, {bacc[rt][nt][j]}')
                for h in range(2): k(f'v_pk_add_f32 {A4.sub(2 * h, 2)}, {A4.sub(2 * h, 2)}, {U4.sub(2 * h, 2)}')
                for h in range(2): k(f'v_cvt_pk_bf16_f32 {XR[rt][nt // 2][2 * (nt % 2) + h]}, {A4[2 * h]}, {A4[2 * h + 1]}')
                if nt % 2:
                    k(f'buffer_store_dwordx4 {XR[rt][nt // 2]}, {l16}, s[28:31], s41 offen offset:{(nt // 2) * 1024} sc1')
                    for j in range(4):
                        k(f'v_dot2c_f32_bf16 {st4[2 * rt]}, {XR[rt][nt // 2][j]}, {t3}')
                        k(f'v_dot2c_f32_bf16 {st4[2 * rt + 1]}, {XR[rt][nt // 2][j]}, {XR[rt][nt // 2][j]}')
        xlane_sum(k, [st4[j] for j in range(4)], [U4[j] for j in range(4)])
        k(f's_lshl_b32 s40, s40, 2'); k(f's_add_u32 s40, s40, {sCg}'); k('s_lshl_b32 s40, s40, 8')
        k(f's_add_u32 s40, s40, {hex(WS_ST)}')
        k('s_mov_b64 exec, 0xffff')
        k(f'buffer_store_dwordx4 {st4}, {l16}, s[28:31], s40 offen sc1')
        k('s_mov_b64 exec, -1')
    def pub_items():
        L_ = []
        for u in range(8):
            if u % 4 == 0: L_.append(S(f's_add_u32 s41, s43, {hex(u * 1024)}', f's_add_u32 s32, s43, {hex(8192 + u * 1024)}'))
            for qt in range(2):
                L_.append((f'buffer_store_dwordx4 {O(2 * u, qt)}, {l16}, s[28:31], {("s41", "s32")[qt]} offen offset:{(u % 4) * 1024}' + opt.get('pmod2', ' sc1'), None))
        L_.append((f'buffer_store_dwordx4 {ML}, {l16}, s[28:31], s42 offen sc1', None))
        return L_
    k(f'v_lshrrev_b32 {t0}, 4, {lane}')
    k(f'v_lshlrev_b32 {t0}, 2, {t0}')
    k(f'v_and_b32 {t1}, 15, {lane}')
    MK = lambda r: f's[{64 + 2 * r}:{65 + 2 * r}]'
    for r in range(4):
        k(f'v_add_u32 {t2}, {r}, {t0}')
        k(f'v_cmp_le_u32 {MK(r)}, {t2}, {t1}')
    zero_o = [(f'v_mov_b64 v[{128 + i}:{129 + i}], 0', None) for i in range(0, 128, 2)]
    def zero_state():
        for qt in range(2): k(f'v_mov_b32 {L[qt][0]}, 0')
        for kt in range(2):
            for qt in range(2):
                for j in (0, 2): k(f'v_mov_b64 {NM[kt][qt].sub(j, 2)}, 0')
        k(f'v_mov_b32 {ML[0]}, 0'); k(f'v_mov_b32 {ML[2]}, 0')
    def seg_counts():
        k(f's_sub_u32 {sIdle}, 3, {sw}')
        k(f's_mul_i32 {sIdle}, {sIdle}, {sDiag}')
        k(f's_sub_u32 {sCnt}, {sU}, {sIdle}')
        k(f's_sub_u32 {sCnt}, {sCnt}, 1')
    def apply_mask():
        k(f'v_mov_b32 {t0}, {hex(f2u(-1e30))}')
        for r in range(4):
            for q in range(2):
                k(f'v_cndmask_b32 {NM[q][q][r]}, {t0}, {NM[q][q][r]}, {MK(r)}')
            k(f'v_mov_b32 {NM[1][0][r]}, {t0}')
    zero_state()
    seg_counts()

    def sync(first=False, pstep=False):
        ats()
        if pstep:
            ls_ = k.newlabel('s')
            k(f's_cmp_lg_u32 {sPend}, 0'); k(f's_cbranch_scc1 {ls_}')
            k('s_waitcnt vmcnt(16)')
            k.label(ls_)
            k('s_waitcnt lgkmcnt(0)')
        else: k(f's_waitcnt vmcnt({24 if first else 16}) lgkmcnt(0)')
        k('s_barrier')
    def dma_items(par):
        r = sK[(par + 1) % 2]; o = sK[par]
        base = 0x8000 if par == 0 else 0
        it = [[(f's_add_u32 m0, {sD}, {hex(base + 0x4000)}', None)]]
        it += vdma_(r, vdma)
        it.append([(f's_add_u32 {r}, {o}, 0x4000', None)])
        it.append([(f's_cmp_eq_u32 {r}, {sEnd}', None), (f's_cselect_b32 {r}, {sJump}, {r}', None)])
        it.append([(f's_add_u32 m0, {sD}, {hex(base)}' if base else f's_mov_b32 m0, {sD}', None)])
        it += kdma(r, vdma)
        if par == 0: it.append([(f's_xor_b32 {sD}, {sD}, 0x10000', None)])
        return it
    def kreads(par, n=16): return [(f'ds_read_b128 {Kf(i // 8, i % 8)}, {rp} offset:{par * 32768 + i * 1024}', None) for i in range(n)]
    def vreads(par, n=16): return [(f'ds_read_b128 {Vf(i)}, {rp} offset:{par * 32768 + 16384 + i * 1024}', None) for i in range(n)]
    def rp_toggle(par): return [(f'v_xor_b32 {rp}, 0x10000, {rp}', None)] if par == 1 else []
    def g1(b, chain=None):
        Lm = []
        if chain is None: chain = opt.get('g1chain', 1)
        for kt in range(2):
            for ds, qt in ([(d, q) for q in range(2) for d in range(8)] if chain else [(d, q) for d in range(8) for q in range(2)]):
                if True:
                    c = NM[kt][qt] if ds == 0 else Sx[b][kt][qt]
                    Lm.append(f'{MF} {Sx[b][kt][qt]}, {Kf(kt, ds)}, {Qf(qt, ds)}, {c}')
        return Lm
    def g2(b):
        Lm = []
        for dt in range(16):
            for qt in ((1, 0) if dt % 2 and opt.get('g2snake', 1) else (0, 1)):
                Lm.append(f'{MF} {O(dt, qt)}, {Vf(dt)}, {P[b][qt]}, {O(dt, qt)}')
        return Lm
    def commit(b): return [(f'v_add_f32 {L[qt][0]}, {L[qt][0]}, {US[b][qt]}', None) for qt in range(2)]
    def softmax(b):
        G = []
        n = 0
        for kt in range(2):
            for qt in range(2):
                for h in range(2):
                    e0 = E[(2 * n) % 8]; e1 = E[(2 * n + 1) % 8]; n += 1
                    u_ = US[b][qt]
                    ad = [f'v_add_f32 {u_}, {e0}, {e1}'] if kt == 0 and h == 0 else [f'v_add_f32 {u_}, {u_}, {e0}', f'v_add_f32 {u_}, {u_}, {e1}']
                    G.append([(f'v_exp_f32 {e0}, {Sx[b][kt][qt][2 * h]}', None), (f'v_exp_f32 {e1}, {Sx[b][kt][qt][2 * h + 1]}', None)] +
                             [(x, None) for x in ad] + [(f'v_cvt_pk_bf16_f32 {P[b][qt][kt * 2 + h]}, {e0}, {e1}', None)])
        return G
    NP1 = opt.get('np1', 5)
    EV = opt.get('ev', 10)
    def sm_pipe(G):
        out = []
        for i, g in enumerate(G):
            out += g[:2]
            if i > 0: out += G[i - 1][2:]
        if G: out += G[-1][2:]
        return out
    def sm_streams(G, head=[], tail=[], start=0):
        ex = dict(items=[x for g in G for x in g[:2]], start=start)
        va = dict(items=list(head))
        need = [0] * len(head); endp = []
        for i, g in enumerate(G):
            va['items'] += g[2:]; need += [2 * (i + 1)] * len(g[2:]); endp.append(len(va['items']))
        va['items'] += tail; need += [2 * len(G)] * len(tail)
        va['gate'] = lambda gi, p: ex['done'] >= need[p]
        ex['gate'] = lambda gi, p: p // 2 < 4 or va['done'] >= endp[p // 2 - 4]
        return [ex, va]
    def check(b):
        return [(f'v_max_f32 {chk}, {US[b][0]}, {US[b][1]}', None), (f'v_cmp_ngt_f32 vcc, 2.0, {chk}', None)]
    def rowmax_delta(b, init):
        for qt, d in ((0, t2), (1, t3)):
            a = Sx[b][0][qt]; c = Sx[b][1][qt]
            k(f'v_max3_f32 {d}, {a[0]}, {a[1]}, {a[2]}')
            k(f'v_max3_f32 {d}, {d}, {a[3]}, {c[0]}')
            k(f'v_max3_f32 {d}, {d}, {c[1]}, {c[2]}')
            k(f'v_max_f32 {d}, {d}, {c[3]}')
        for op in ('v_permlane32_swap_b32', 'v_permlane16_swap_b32'):
            k(f'v_mov_b32 {t0}, {t2}'); k(f'v_mov_b32 {t1}, {t3}')
            k(f'{op} {t2}, {t0}'); k(f'{op} {t3}, {t1}')
            k(f'v_max_f32 {t2}, {t2}, {t0}'); k(f'v_max_f32 {t3}, {t3}, {t1}')
        for d in (t2, t3):
            k(f'v_add_f32 {d}, {hex(f2u(BIAS))}, {d}')
            if not init: k(f'v_max_f32 {d}, 0, {d}')
    def sub_delta(regs2):
        for kt in range(2):
            for qt, d in ((0, t2), (1, t3)):
                for j in range(4): k(f'v_sub_f32 {regs2[kt][qt][j]}, {regs2[kt][qt][j]}, {d}')
    def rescale(b, other_live, ret):
        rowmax_delta(b, False)
        sub_delta(Sx[b])
        if other_live: sub_delta(Sx[1 - b])
        sub_delta(NM)
        k(f'v_sub_f32 {ML[0]}, {ML[0]}, {t2}'); k(f'v_sub_f32 {ML[2]}, {ML[2]}, {t3}')
        k(f'v_exp_f32 {t2}, -{t2}'); k(f'v_exp_f32 {t3}, -{t3}')
        for dt in range(16):
            for qt, d in ((0, t2), (1, t3)):
                for j in range(4): k(f'v_mul_f32 {O(dt, qt)[j]}, {O(dt, qt)[j]}, {d}')
        for qt, d in ((0, t2), (1, t3)):
            k(f'v_mul_f32 {L[qt][0]}, {L[qt][0]}, {d}')
        emit(sm_pipe(softmax(b)))
        k(f's_branch {ret}')
    lab = lambda s, par: f'{name}_{s}{par}'
    X1 = lambda qt, ks: Reg('a', (ks * 2 + qt) * 4 if ks < 8 else 192 + ((ks - 8) * 2 + qt) * 4, 4)
    SPT = OX.sub(0, 8)
    PML = OX.sub(16, 4)
    def x1_base():
        k(f's_lshl_b32 s49, {srb}, 3'); k(f's_lshl_b32 s41, {sw}, 1'); k('s_add_u32 s49, s49, s41')
        k(f's_mul_i32 s54, s49, {14 * 1024}'); k(f's_add_u32 s54, s54, {hex(WS_X1)}')
        k(f's_add_u32 s55, s54, {14 * 1024}')
    def x1_loads(k0, k1):
        xl = []
        for ks in range(k0, k1):
            if ks and ks % 4 == 0: xl.append(S('s_add_u32 s54, s54, 0x1000', 's_add_u32 s55, s55, 0x1000'))
            for qt in range(2): xl.append((f'buffer_load_dwordx4 {X1(qt, ks)}, {l16}, s[28:31], s{54 + qt} offen offset:{(ks % 4) * 1024} sc1', None))
        return xl

    for _ in range(opt.get('idle', 0)): k('s_sleep 64')
    sync(first=True)
    if stamp: st_at(k, 5)
    k(f's_cmp_eq_u32 {sSp}, 1')
    k(f's_cbranch_scc1 {lab("pre", 1)}')
    for par in range(2):
        k.label(lab('pre', par))
        emit(kreads(par)); emit(rp_toggle(par)); emit(dma_items(par))
        k(f's_branch {lab("P", 1 - par)}')

    for par in range(2):
        k.label(lab('P', par))
        k(f's_cmp_lg_u32 {sCnt}, 0')
        lskip = k.newlabel('nm')
        k(f's_cbranch_scc1 {lskip}')
        apply_mask()
        k.label(lskip)
        sync(pstep=True)
        lst, _ = pack(g1(par, 0), [dict(items=kreads(par) + rp_toggle(par), gate=lambda gi, p: gi >= 2 * p + 1), dict(items=dma_items(par), stride=3), dict(items=list(zero_o))])
        emit(lst)
        rowmax_delta(par, True)
        sub_delta(Sx[par]); sub_delta(NM)
        k(f'v_sub_f32 {ML[0]}, {ML[0]}, {t2}'); k(f'v_sub_f32 {ML[2]}, {ML[2]}, {t3}')
        emit(sm_pipe(softmax(par)[:NP1]))
        k(f's_mov_b32 {sPar}, {1 - par}')
        k(f's_branch {name}_pd')
    tl, er, lnp, lsg, l2s = [k.newlabel('pd') for _ in range(5)]
    k.label(f'{name}_pd')
    k(f's_mov_b32 {sRem}, {sCnt}')
    k(f's_cmp_eq_u32 {sPend}, 0'); k(f's_cbranch_scc1 {lnp}')
    k('s_waitcnt vmcnt(0)')
    k('s_barrier')
    k(f's_cmp_lg_u32 {sw}, 0'); k(f's_cbranch_scc1 {lsg}')
    k(f's_lshl_b32 s40, {shead}, 7'); k(f'v_mov_b32 {t0}, s40')
    k(f's_add_u32 s40, {srb}, {FL_H}'); k('s_lshl_b32 s40, s40, 7'); k(f'v_writelane_b32 {t0}, s40, 1')
    k(f'v_mov_b32 {t1}, 1')
    k('s_mov_b64 exec, 3')
    k(f'buffer_atomic_add {t1}, {t0}, s[20:23], 0 offen sc1')
    k('s_mov_b64 exec, -1')
    k.label(lsg)
    k(f's_mov_b32 {sPend}, 0')
    if NEARLY >= 2:
        assert EV <= 10
        lnk = k.newlabel('pd')
        k(f's_cmp_eq_u32 {sHev}, 0'); k(f's_cbranch_scc1 {lnk}')
        k(f's_mov_b32 {sPf}, 2')
        k(f's_sub_u32 {sRem}, {sRem}, {EV}'); k(f's_mov_b32 {sCnt}, {EV - 1}')
        k(f's_branch {er}')
        k.label(lnk)
    k(f's_cmp_lg_u32 {srb}, 0'); k(f's_cbranch_scc1 {l2s}')
    kv_regs()
    k(f'v_mov_b32 {vF}, 0')
    poll(t0, t1, vF, w0=True)
    k('s_barrier')
    k(f's_branch {tl}')
    k.label(lnp)
    k(f's_cmp_eq_u32 {sHev}, 0'); k(f's_cbranch_scc1 {tl}')
    k.label(l2s)
    k(f's_sub_u32 {sRem}, {sRem}, 2'); k(f's_mov_b32 {sCnt}, 1')
    k(f's_branch {er}')

    for par in range(2):
        k.label(lab('H', par))
        k(f's_cmp_eq_u32 {sPf}, {PH_LAST + 1}'); k(f's_cbranch_scc1 {lab("T", par)}')
        k(f's_mov_b32 {sPar}, {par}')
        k(f's_mov_b32 {sCnt}, 0')
        k(f's_add_u32 {sPf}, {sPf}, 1')
        k(f's_cmp_le_u32 {sPf}, {PH_LAST}'); k(f's_cbranch_scc1 {name}_ev')
        apply_mask()
        k(f's_branch {lab("M", par)}')
    ev = [k.newlabel('ev') for _ in range(7)]
    e1s = k.newlabel('ev')
    k.label(f'{name}_ev')
    for p_ in (2, 3, 4, 5, 6):
        k(f's_cmp_eq_u32 {sPf}, {p_}'); k(f's_cbranch_scc1 {ev[p_]}')
    kv_regs()
    k(f'buffer_load_dword {vF}, {t0}, s[20:23], 0 offen sc1')
    k(f's_branch {e1s}')
    k.label(ev[2])
    kv_regs()
    poll(t0, t1, vF)
    k(f's_cmp_eq_u32 {sHev}, 0'); k(f's_cbranch_scc1 {tl}')
    k(f's_sub_u32 {sRem}, {sRem}, {EV - 3}'); k(f's_mov_b32 {sCnt}, {EV - 4}')
    k(f's_branch {er}')
    k.label(ev[3])
    hall_regs()
    k(f'buffer_load_dword {vF}, {t0}, s[20:23], 0 offen sc1')
    k(f's_cmp_eq_u32 {sCg}, 7'); k(f's_cbranch_scc1 {e1s}')
    x1_pre1()
    k(f's_branch {e1s}')
    k.label(ev[4])
    hall_regs()
    poll(t0, t1, vF)
    cs_dma()
    k(f's_cmp_eq_u32 {sCg}, 7'); k(f's_cbranch_scc1 {tl}')
    emit(xl_items(0, NXE))
    k(f's_branch {e1s}')
    k.label(ev[5])
    x1_stage()
    k(f's_sub_u32 {sRem}, {sRem}, 3'); k(f's_mov_b32 {sCnt}, 2')
    k(f's_branch {er}')
    k.label(ev[6])
    k(f's_add_u32 s40, {shead}, {FL_X}'); k('s_lshl_b32 s40, s40, 7')
    signal('s40', t0)
    k.label(tl)
    lt0, lh0 = k.newlabel('tl'), k.newlabel('tl')
    k(f's_sub_u32 {sPf}, {PH_LAST + 1}, {sDiag}')
    k(f's_cmp_eq_u32 {sRem}, 0'); k(f's_cbranch_scc1 {lt0}')
    k(f's_add_u32 s40, {sDiag}, 1')
    k(f's_sub_u32 {sCnt}, {sRem}, s40'); k(f's_cbranch_scc0 {er}')
    k(f's_cmp_eq_u32 {sPar}, 0'); k(f's_cbranch_scc1 {lab("H", 0)}')
    k(f's_branch {lab("H", 1)}')
    k.label(lt0)
    k(f's_cmp_eq_u32 {sPar}, 0'); k(f's_cbranch_scc1 {lab("T", 0)}')
    k(f's_branch {lab("T", 1)}')
    k.label(e1s)
    k(f's_sub_u32 {sRem}, {sRem}, 1')
    k.label(er)
    k(f's_cmp_eq_u32 {sPar}, 0'); k(f's_cbranch_scc1 {lab("M", 0)}')
    k(f's_branch {lab("M", 1)}')

    k.raw('.p2align 6')
    for par in range(2):
        k.label(lab('M', par))
        sync()
        dm = dma_items(par)
        def mkpat(d, e):
            p = ['.'] * 32
            for i in d: p[i] = 'd'
            for i in e: p[i] = 'e'
            n = 0
            for i in range(32):
                if p[i] == '.' and n < 16: p[i] = 'r'; n += 1
            return ''.join(p)
        PATS = {5: (([2, 10, 18, 26], [4, 6, 8, 12, 14, 16]), ([2, 10, 28, 30], [4, 6, 8, 12, 14, 16, 18, 20, 22, 24])),
                4: (([4, 12, 26, 29], [1, 3, 6, 8, 10, 13, 15, 17]), ([3, 11, 19, 28], [1, 5, 8, 10, 13, 16, 21, 27]))}
        G1P, G2P = [mkpat(*x) for x in opt.get('pats', PATS[NP1])]
        gp = lambda pat, c: {i for i, x in enumerate(pat) if x == c}
        for pat, ne in ((G1P, 16 - 2 * NP1), (G2P, 2 * NP1)): assert (len(pat), pat.count('r'), pat.count('d'), pat.count('e')) == (32, 16, 4, ne), pat
        sm = sm_streams(softmax(1 - par)[NP1:], tail=check(1 - par)); sm[0]['gaps'] = gp(G1P, 'e')
        lst, left = pack(g1(par), [dict(items=dm[:8], gaps=gp(G1P, 'd')), dict(items=vreads(par), gaps=gp(G1P, 'r'))] + sm)
        assert left == 0, left
        emit(lst)
        k('s_waitcnt lgkmcnt(0)')
        k(f's_cbranch_vccnz {lab("R", par)}')
        k.label(lab('Rr', par))
        sm = sm_streams(softmax(par)[:NP1], head=commit(1 - par)); sm[0]['gaps'] = gp(G2P, 'e')
        lst, left = pack(g2(1 - par), [dict(items=dm[8:] + [S(f's_sub_u32 {sCnt}, {sCnt}, 1')], gaps=gp(G2P, 'd')), dict(items=kreads(par) + rp_toggle(par), gaps=gp(G2P, 'r'))] + sm)
        assert left == 0, left
        emit(lst)
        if par == 0: k(f's_cbranch_scc1 {lab("H", 1)}')
        else:
            k(f's_cbranch_scc0 {lab("M", 0)}')
            k(f's_branch {lab("H", 0)}')

    for par in range(2):
        k.label(lab('R', par))
        rescale(1 - par, True, lab('Rr', par))
        k.label(lab('RT', par))
        rescale(1 - par, False, lab('RTr', par))

    def part_base():
        k(f's_lshl_b32 s40, {sAH}, 3')
        k(f's_add_u32 s40, s40, {spair}')
        k(f's_mul_i32 s42, s40, {PART_STRIDE}')
        k(f's_add_u32 s42, s42, {hex(WS_P)}')
        k(f's_lshl_b32 s41, {sw}, 14')
        k(f's_add_u32 s43, s42, s41')
        k(f's_lshl_b32 s41, {sw}, 10')
        k(f's_add_u32 s42, s42, s41')
        k(f's_add_u32 s42, s42, 0x10000')
    PZ = [big.sub(4 * n, 4) for n in range(8)] + [big.sub(40 + 4 * n, 4) for n in range(6)] + [T.sub(0, 4), T.sub(4, 4)]
    for par in range(2):
        k.label(lab('T', par))
        lt2 = k.newlabel('t')
        k(f's_cmp_lg_u32 {sNext}, 0'); k(f's_cbranch_scc1 {lt2}')
        k(f's_add_u32 s40, {srb}, {FL_X}'); k('s_lshl_b32 s40, s40, 7')
        k(f'buffer_load_dword {vF}, off, s[20:23], s40 sc1')
        k.label(lt2)
        sync()
        lq2 = k.newlabel('nq')
        sm2 = [x for x, _ in sm_pipe(softmax(1 - par)[NP1:]) + check(1 - par)]
        emit(mix(sm2, vreads(par), 1))
        k(f's_cbranch_vccnz {lab("RT", par)}')
        k.label(lab('RTr', par))
        lx, ly = k.newlabel('nx'), k.newlabel('ny')
        k(f's_cmp_lg_u32 {sNext}, 0'); k(f's_cbranch_scc1 {ly}')
        x1_base()
        if opt.get('cpf2', 1): code_pf(f'{name}_epi', f'{name}_end', t0, msk, 3)
        k('s_lshl_b32 s32, s49, 10'); k(f's_add_u32 s32, s32, {hex(WS_ST)}')
        stl = [(f'buffer_load_dwordx4 {SPT.sub(4 * i, 4)}, {l16}, s[28:31], s32 offen offset:{i * 1024} sc1', None) for i in range(2)]
        def tg2(extra, first=False):
            d = dma_items(par)
            lst, left = pack(g2(1 - par), [dict(items=(extra + d) if first else (d + extra), stride=1.75), dict(items=kreads(par) + rp_toggle(par), start=1), dict(items=commit(1 - par))])
            emit(lst)
            k(f's_branch {lab("I", 1 - par)}')
        G = g2(1 - par); NG1 = opt.get('tg1', 14)
        kr = dict(items=kreads(par) + rp_toggle(par), start=1, keep=True); dd = dict(items=dma_items(par), stride=2, keep=True)
        lst, left = pack(G[:NG1], [dd, kr, dict(items=commit(1 - par))]); emit(lst)
        end_regs()
        poll(t0, t1, vF)
        kr['keep'] = False; kr['start'] = 0
        lst, left = pack(G[NG1:], [dict(items=dd['items'] + stl + x1_loads(0, 4), stride=2), kr]); emit(lst)
        k(f's_branch {lab("I", 1 - par)}')
        k.label(ly)
        tg2(split_loads(qloads(), 8)[0])
    for par in range(2):
        k.label(lab('I', par))
        k(f's_mov_b32 {sPar}, {par}')
        k(f's_sub_u32 {sIdle}, {sIdle}, 1')
        k(f's_cbranch_scc1 {name}_epi')
        sync()
        emit(kreads(par)); emit(rp_toggle(par)); emit(dma_items(par))
        if par == 1: k(f's_branch {lab("I", 0)}')

    k.label(f'{name}_epi')
    xlane_sum(k, [L[0][0], L[1][0]], [t0, t1])
    lfinal = k.newlabel('final')
    k(f's_cmp_eq_u32 {sNext}, 0')
    k(f's_cbranch_scc1 {lfinal}')
    if stamp: st_at(k, 6)
    if opt.get('bts'): ats()
    sc = [T.sub(0, 2), T.sub(2, 2)]
    def scale_pack(park):
        pv = []
        for u in range(8):
            for qt in range(2):
                a_ = O(2 * u, qt); b_ = O(2 * u + 1, qt)
                for d in (a_, b_):
                    for j in (0, 2): pv.append(f'v_pk_mul_f32 {d.sub(j, 2)}, {d.sub(j, 2)}, {sc[qt]}')
                pv += [f'v_cvt_pk_bf16_f32 {a_[0]}, {a_[0]}, {a_[1]}', f'v_cvt_pk_bf16_f32 {a_[1]}, {a_[2]}, {a_[3]}',
                       f'v_cvt_pk_bf16_f32 {a_[2]}, {b_[0]}, {b_[1]}', f'v_cvt_pk_bf16_f32 {a_[3]}, {b_[2]}, {b_[3]}']
                if park: pv += [f'v_accvgpr_write_b32 a{192 + (u * 2 + qt) * 4 + j}, {a_[j]}' for j in range(4)]
        return pv
    for qt in range(2): k(f'v_rcp_f32 {sc[qt][0]}, {L[qt][0]}')
    for qt in range(2): k(f'v_mul_f32 {sc[qt][0]}, {sc[qt][0]}, {G2[qt]}')
    for qt in range(2): k(f'v_mov_b32 {sc[qt][1]}, {sc[qt][0]}')
    emit(mix(scale_pack(True), split_loads(qloads(), 8)[1], 12))
    k(f's_xor_b32 {sHev}, {sHev}, 1'); k(f's_mov_b32 {sPf}, 2')
    k(f's_lshl_b32 {sEnd}, {srb}, 2'); k(f's_sub_u32 {sEnd}, 64, {sEnd}')
    k(f's_sub_u32 {sU}, {sEnd}, {sUA}')
    k(f's_lshl_b32 {sEnd}, {sEnd}, 14')
    k(f's_lshl_b32 s40, {sAH}, 20'); k(f's_add_u32 {sEnd}, {sEnd}, s40')
    k(f's_mov_b32 {sNext}, 0')
    k(f's_sub_u32 {sJump}, s10, {15 * 16384}')
    zero_state()
    seg_counts()
    k('s_waitcnt vmcnt(0)')
    k(f's_cmp_eq_u32 {sPar}, 0')
    k(f's_cbranch_scc1 {lab("P", 0)}')
    k(f's_branch {lab("P", 1)}')

    k.label(lfinal)
    if stamp: st_at(k, 7)
    ats()
    if opt.get('ats'):
        k(f'v_lshlrev_b32 {t0}, 2, v0'); k('s_lshl_b32 s80, s2, 10'); k(f's_add_u32 s80, s80, {hex(102 * MB)}')
        k(f'buffer_store_dword {vS}, {t0}, s[28:31], s80 offen')
    lnpub = k.newlabel('npub')
    k(f's_cmp_lg_u32 {sMode}, 1'); k(f's_cbranch_scc1 {lnpub}')
    part_base()
    for qt in range(2): k(f'v_rcp_f32 {sc[qt][0]}, {L[qt][0]}')
    k(f'v_mov_b32 {ML[1]}, {L[0][0]}'); k(f'v_mov_b32 {ML[3]}, {L[1][0]}')
    for qt in range(2): k(f'v_mov_b32 {sc[qt][1]}, {sc[qt][0]}')
    pv = scale_pack(False)
    for x in pv[:8]: k(x)
    emit(mix(pv[8:], pub_items(), 8))
    k.label(lnpub)
    al = [t2, t3]; be = [PML.sub(0, 2), PML.sub(2, 2)]
    lfix, lfr = k.newlabel('fix'), k.newlabel('fr')
    def merge():
        for qt in range(2): k(f'v_sub_f32 {PML[2 * qt]}, {ML[2 * qt]}, {PML[2 * qt]}')
        k(f'v_max_f32 {t0}, {PML[0]}, {PML[2]}')
        k(f'v_cmp_lt_f32 vcc, {hex(f2u(60.0))}, {t0}')
        k(f's_cbranch_vccnz {lfix}')
        k.label(lfr)
        sc2 = [OX.sub(0, 2), OX.sub(2, 2)]
        for qt in range(2): k(f'v_exp_f32 {PML[2 * qt]}, {PML[2 * qt]}')
        for qt in range(2): k(f'v_mul_f32 {PML[2 * qt]}, {PML[2 * qt]}, {PML[2 * qt + 1]}')
        for qt in range(2): k(f'v_add_f32 {L[qt][0]}, {L[qt][0]}, {PML[2 * qt]}')
        for qt in range(2): k(f'v_rcp_f32 {sc2[qt][0]}, {L[qt][0]}')
        for qt in range(2): k(f'v_mul_f32 {sc2[qt][0]}, {sc2[qt][0]}, {G2[qt]}')
        for qt in range(2): k(f'v_mul_f32 {PML[2 * qt]}, {PML[2 * qt]}, {sc2[qt][0]}')
        for qt in range(2):
            k(f'v_mov_b32 {sc2[qt][1]}, {sc2[qt][0]}'); k(f'v_mov_b32 {PML[2 * qt + 1]}, {PML[2 * qt]}')
        for dt in range(16):
            for qt in range(2):
                for j in (0, 2): k(f'v_pk_mul_f32 {O(dt, qt).sub(j, 2)}, {O(dt, qt).sub(j, 2)}, {sc2[qt]}')
        for qt in range(2):
            for u in range(8):
                src = Reg('a', (qt * 8 + u) * 4, 4)
                for j in range(4): k(f'v_accvgpr_read_b32 {T[j]}, {src[j]}')
                for j in range(4):
                    k(f'v_lshlrev_b32 {E[2 * j]}, 16, {T[j]}'); k(f'v_and_b32 {E[2 * j + 1]}, 0xffff0000, {T[j]}')
                for j in range(4):
                    o = O(2 * u + j // 2, qt).sub((j % 2) * 2, 2)
                    k(f'v_pk_fma_f32 {o}, {E.sub(2 * j, 2)}, {be[qt]}, {o}')
                a_ = O(2 * u, qt); b_ = O(2 * u + 1, qt)
                k(f'v_cvt_pk_bf16_f32 {a_[0]}, {a_[0]}, {a_[1]}'); k(f'v_cvt_pk_bf16_f32 {a_[1]}, {a_[2]}, {a_[3]}')
                k(f'v_cvt_pk_bf16_f32 {a_[2]}, {b_[0]}, {b_[1]}'); k(f'v_cvt_pk_bf16_f32 {a_[3]}, {b_[2]}, {b_[3]}')
    cacc = [[big.sub((qt * 7 + nt) * 4, 4) for nt in range(7)] for qt in range(2)]
    k(f'v_and_b32 {t0}, 0x30, {lane}')
    k(f's_lshl_b32 s41, {sw}, 10'); k(f's_add_u32 s41, s41, {hex(CSL)}')
    k(f'v_add_u32 {t0}, s41, {t0}')
    k.wait('cs')
    for nt in range(7): k(f'ds_read_b128 {cacc[0][nt]}, {t0} offset:{nt * 128}')
    for qt in range(2): k(f'v_rcp_f32 {al[qt]}, {L[qt][0]}')
    emit(x1_loads(4, 6))
    for qt in range(2): k(f'v_mul_f32 {al[qt]}, {al[qt]}, {G2[qt]}')
    k(f'v_cmp_gt_u32 vcc, 48, {lane}')
    for j in range(4): k(f'v_cndmask_b32 {SPT[4 + j]}, 0, {SPT[4 + j]}, vcc')
    for j in (0, 2): k(f'v_pk_add_f32 {SPT.sub(j, 2)}, {SPT.sub(j, 2)}, {SPT.sub(4 + j, 2)}')
    xlane_sum(k, [SPT[j] for j in range(4)], [SPT[4 + j] for j in range(4)])
    k(f's_mov_b32 s40, {hex(f2u(-1.0 / 448))}')
    CP = [[OX.sub(4, 2), OX.sub(6, 2)], [OX.sub(8, 2), OX.sub(10, 2)], [OX.sub(12, 2), OX.sub(14, 2)]]
    C0, C1, CQ = [[p_[0] for p_ in c_] for c_ in CP]
    NMU = [E.sub(0, 2), E.sub(2, 2)]
    for qt in range(2):
        k(f'v_mul_f32 {NMU[qt][0]}, s40, {SPT[2 * qt]}')
        k(f'v_mul_f32 {NMU[qt][1]}, s40, {SPT[2 * qt]}')
    for nt in range(7):
        for qt in (1, 0):
            for j in (0, 2): k(f'v_pk_mul_f32 {cacc[qt][nt].sub(j, 2)}, {cacc[0][nt].sub(j, 2)}, {NMU[qt]}')
    cst = []
    for qt in range(2):
        r0 = E[4 + 2 * qt]; r1 = E[5 + 2 * qt]
        cst += [f'v_mul_f32 {r0}, {NMU[qt][0]}, {NMU[qt][0]}', f'v_fma_f32 {r0}, -{SPT[2 * qt + 1]}, s40, -{r0}', f'v_max_f32 {r0}, 0, {r0}',
                f'v_add_f32 {r0}, {hex(f2u(1e-5))}, {r0}', f'v_rsq_f32 {r0}, {r0}', f'v_sub_f32 {r1}, 1.0, {G2[qt]}',
                f'v_mul_f32 {C0[qt]}, {hex(f2u(GK0))}, {r0}', f'v_mul_f32 {r1}, {r1}, {r0}', f'v_rcp_f32 {r1}, {r1}', f'v_mul_f32 {C1[qt]}, {r0}, {r0}',
                f'v_min_f32 {CQ[qt]}, {hex(f2u(1e30))}, {r1}', f'v_mul_f32 {C1[qt]}, {C1[qt]}, {r0}', f'v_mul_f32 {C1[qt]}, {hex(f2u(GK1))}, {C1[qt]}']
        cst += [f'v_mov_b32 {CP[i][qt][1]}, {CP[i][qt][0]}' for i in range(3)]
    CF = lambda qt, u: O(2 * u, qt)
    packs = []
    for u in range(8):
        for qt in range(2):
            a = O(2 * u, qt); b = O(2 * u + 1, qt)
            packs += [(f'v_mul_f32 {d[j]}, {d[j]}, {al[qt]}', None) for d in (a, b) for j in range(4)]
            packs += [(f'v_cvt_pk_bf16_f32 {a[0]}, {a[0]}, {a[1]}', None), (f'v_cvt_pk_bf16_f32 {a[1]}, {a[2]}, {a[3]}', None),
                      (f'v_cvt_pk_bf16_f32 {a[2]}, {b[0]}, {b[1]}', None), (f'v_cvt_pk_bf16_f32 {a[3]}, {b[2]}, {b[3]}', None)]
    extra = [cacc[0][1], cacc[0][3], cacc[0][5], cacc[1][1], cacc[1][3], cacc[1][5], big.sub(56, 4), big.sub(60, 4)]
    NSET = 6; oend = []
    def oacc(qt, nt):
        st_ = nt // 2 % NSET
        return O(2 * (st_ * 2 + nt % 2) + 1, qt) if st_ < 4 else extra[(st_ - 4) * 4 + (nt % 2) * 2 + qt]
    UF = lambda qt, ks: cacc[qt][2 * ks]
    def gelu_list():
        G = []
        qs = [(qt, nt) for nt in range(7) for qt in range(2)]
        tmp = [E.sub(0, 4), E.sub(4, 4), T.sub(0, 4), T.sub(4, 4)]
        for g0_ in range(0, 14, 4):
            grp = [(qt, cacc[qt][nt], tmp[i], nt) for i, (qt, nt) in enumerate(qs[g0_:g0_ + 4])]
            for fn in (lambda a, t, q: f'v_pk_mul_f32 {t}, {a}, {a}', lambda a, t, q: f'v_pk_fma_f32 {t}, {t}, {CP[1][q]}, {CP[0][q]}', lambda a, t, q: f'v_pk_mul_f32 {t}, {t}, {a}'):
                G += [fn(a.sub(j, 2), t.sub(j, 2), q) for q, a, t, _ in grp for j in (0, 2)]
            G += [f'v_exp_f32 {t[j]}, {t[j]}' for q, a, t, _ in grp for j in range(4)]
            G += [f'v_pk_fma_f32 {t.sub(j, 2)}, {t.sub(j, 2)}, {CP[2][q]}, {CP[2][q]}' for q, a, t, _ in grp for j in (0, 2)]
            G += [f'v_rcp_f32 {t[j]}, {t[j]}' for q, a, t, _ in grp for j in range(4)]
            G += [f'v_pk_mul_f32 {a.sub(j, 2)}, {a.sub(j, 2)}, {t.sub(j, 2)}' for q, a, t, _ in grp for j in (0, 2)]
            for q, a, t, nt in grp:
                d = UF(q, nt // 2); o = (nt % 2) * 2
                G += [f'v_cvt_pk_bf16_f32 {d[o]}, {a[0]}, {a[1]}', f'v_cvt_pk_bf16_f32 {d[o + 1]}, {a[2]}, {a[3]}']
        G += [f'v_mov_b64 {UF(q, 3).sub(2, 2)}, 0' for q in range(2)]
        return G
    k(f's_mul_i32 s66, {srb}, {14 * 64 * 1024}'); k(f's_lshr_b32 s41, {shead}, 1'); k('s_lshl_b32 s41, s41, 13'); k('s_add_u32 s66, s66, s41')
    k(f's_lshl_b32 s41, {sw}, 11'); k('s_add_u32 s66, s66, s41'); k(f's_add_u32 s66, s66, {hex(WS_OP)}')
    k(f's_and_b32 s41, {shead}, 1'); k(f's_mul_i32 s41, s41, {7 * 0x10000}')
    k(f's_sub_u32 s67, {7 * 0x10000}, s41'); k('s_add_u32 s67, s67, s66')
    k('s_add_u32 s66, s66, s41')
    k('s_mov_b32 s64, s67'); k('s_mov_b32 s69, 0x8000')
    k(f's_add_u32 s65, {srb}, {FL_R}'); k('s_lshl_b32 s65, s65, 7'); k(f's_lshl_b32 s41, {shead}, 2'); k('s_add_u32 s65, s65, s41')
    k('s_xor_b32 s68, s65, 4')
    NBZ = [Reg('a', 4 * n, 4) for n in range(14)]
    nb_loads = lambda j0, j1: [y for j in range(j0, j1) for y in
                               [(f'buffer_load_dwordx4 {NBZ[2 * j + qt]}, {l16}, s[28:31], s64 offen offset:{qt * 1024}' + opt.get('nbmod', ' sc1'), None) for qt in range(2)] + [S('s_add_u32 s64, s64, 0x10000')]]
    NBP = opt.get('nbp', [(7, 9, 4), (9, 11, 7)])
    CHK = {c_: (i + 1, ([0] + [x[2] for x in NBP])[i], e_) for i, (s_, c_, e_) in enumerate(NBP)}
    SIGS = {s_: (i + 1, f'op{e_ - 1}') for i, (s_, c_, e_) in enumerate(NBP)}
    NINIT = opt.get('ninit', 1); NJ = opt.get('rnj', 2)
    istr = []
    for u in range(14 - NINIT, 14):
        for qt in range(2):
            z = NBZ[2 * (u - 7) + qt]; a = oacc(qt, 2 * u); b = oacc(qt, 2 * u + 1)
            for j in range(4):
                d = (a, b)[j // 2]; o_ = (j % 2) * 2
                istr += [(f'v_accvgpr_read_b32 {d[o_ + 1]}, {z[j]}', None),
                         (f'v_lshlrev_b32 {d[o_]}, 16, {d[o_ + 1]}' if j else f'v_lshl_or_b32 {d[o_]}, {d[o_ + 1]}, 16, s69', None),
                         (f'v_and_b32 {d[o_ + 1]}, 0xffff0000, {d[o_ + 1]}', None)]
    ist = dict(items=istr, keep=True)
    ostr = []; oready = []
    for u in range(14):
        for qt in range(2):
            n0 = len(ostr)
            a = oacc(qt, 2 * u); b = oacc(qt, 2 * u + 1)
            rdy = 2 * (NC_F + 24 * u + 24) + 4 + (24 * qt if u < 7 else 0)
            if u == 13 - NINIT and qt == 1 or u > 13 - NINIT and u < 13 and qt == 1: pass
            if 7 <= u < 14 - NINIT:
                z = NBZ[2 * (u - 7) + qt]
                mchk = [m_ for m_, c_ in CHK.items() if c_[1] <= u - 7 < c_[2]][0]
                rdy = max(rdy, mchk * 64 + opt.get('nblag', 56))
                ostr += [(f'v_accvgpr_read_b32 {T[j]}, {z[j]}', None) for j in range(4)]
                for j in range(4):
                    d = (a, b)[j // 2]
                    ostr += [(f'v_lshlrev_b32 {E[2 * j]}, 16, {T[j]}' if j else f'v_lshl_or_b32 {E[0]}, {T[0]}, 16, s69', None), (f'v_and_b32 {E[2 * j + 1]}, 0xffff0000, {T[j]}', None)]
                ostr += [(f'v_add_f32 {(a, b)[j // 4][j % 4]}, {(a, b)[j // 4][j % 4]}, {E[j]}', None) for j in range(8)]
            ostr += [(f'v_cvt_pk_bf16_f32 {a[0]}, {a[0]}, {a[1]}', None), (f'v_cvt_pk_bf16_f32 {a[1]}, {a[2]}, {a[3]}', None),
                     (f'v_cvt_pk_bf16_f32 {a[2]}, {b[0]}, {b[1]}', None), (f'v_cvt_pk_bf16_f32 {a[3]}, {b[2]}, {b[3]}', None)]
            ostr.append((f'v_or_b32 {a[0]}, 1, {a[0]}' if u >= 7 else f'v_and_b32 {a[0]}, -2, {a[0]}', None))
            if u and qt == 0: ostr.append([('s_add_u32 s66, s66, 0x10000' if u != 7 else 's_mov_b32 s66, s67', None)])
            ostr.append((f'buffer_store_dwordx4 {a}, {l16}, s[28:31], s66 offen offset:{qt * 1024}' + (opt.get('rawmod', ' sc1') if u < 7 else ' sc1'), f'op{u}'))
            oready += [rdy] * (len(ostr) - n0)
        oend.append(len(ostr))
    NF = NC_F + NO_F + NU_F
    ost = dict(items=ostr, keep=True)
    NH = (NF + 15) // 16
    lh1, lh2, lhj = k.newlabel('th'), k.newlabel('th'), k.newlabel('tj')
    k(f's_load_dwordx2 s[4:5], s[0:1], {ARG["out"]}')
    k('s_waitcnt lgkmcnt(0)')
    if stamp: st_at(k, 8)
    k(f's_cmp_eq_u32 {sMode}, 1'); k(f's_cbranch_scc1 {lh1}')
    k(f's_cmp_eq_u32 {sMode}, 2'); k(f's_cbranch_scc1 {lh2}')
    restore = [(f'v_accvgpr_read_b32 {O(2 * u, qt)[j]}, a{192 + (u * 2 + qt) * 4 + j}', None) for u in range(8) for qt in range(2) for j in range(4)]
    def r_signal(shift):
        ls_ = k.newlabel('sig')
        k(f's_cmp_lg_u32 {sw}, 0'); k(f's_cbranch_scc1 {ls_}')
        k(f's_add_u32 s41, {srb}, {FL_R}'); k('s_lshl_b32 s41, s41, 7')
        k(f's_lshl_b32 s42, {1 << shift}, {shead}' if shift == 0 else f's_lshl_b32 s42, 0x10000, {shead}')
        k(f'v_mov_b32 {t0}, s42')
        k('s_mov_b64 exec, 1')
        k(f'buffer_atomic_add {t0}, off, s[20:23], s41 sc1')
        k('s_mov_b64 exec, -1')
        k.label(ls_)
    RSIG = opt.get('rsig', 10)
    for var, h in [(v_, h) for v_ in range(3) for h in range(6)] + [(3, h) for h in range(6, NH)]:
        if h == 0:
            pst = dict(items=[list(packs), list(restore), []][var], keep=True)
            cstr = dict(items=[(x, None) for x in cst], keep=True)
            xst = dict(items=x1_loads(6, 8), keep=True, stride=2)
            if var == 1: k.label(lh1)
            if var == 2:
                k.label(lh2)
                k('s_mov_b32 s32, s40')
                part_base()
                k(f's_add_u32 s40, s40, {FL_P}'); k('s_lshl_b32 s40, s40, 7')
                k(f'v_mov_b32 {t0}, s40'); k(f'v_mov_b32 {t1}, 1')
                k('s_mov_b32 s40, s32'); k('s_mov_b32 s32, s43')
        if h == (2 if var == 1 else 1):
            assert var != 1 or not pst['items']
            xst['items'] += x1_loads(8, 14)
        if var == 2 and h == 5: xst['items'].append((f'buffer_load_dword {t2}, {t0}, s[20:23], 0 offen sc1', None))
        if opt.get('tts'):
            k('s_memtime s[80:81]'); k('s_waitcnt lgkmcnt(0)'); k(f'v_writelane_b32 {vS}, s80, {h}')
        par = (h // 2) % 2
        B = (lambda i: Kf(i // 8, i % 8)) if h % 2 == 0 else Vf
        M = []
        for f in range(16 * h, min(NF, 16 * h + 16)):
            b = B(f - 16 * h)
            for qt in ((1, 0) if f % 2 and opt.get('czig', 0) else (0, 1)):
                if f < NC_F:
                    ks, nt = divmod(f, 7)
                    M.append(f'{MF} {cacc[qt][nt]}, {b}, {X1(qt, ks)}, {cacc[qt][nt]}')
                else:
                    pr, r_ = divmod(f - NC_F, 24); ks, t_ = divmod(r_, 2); nt = 2 * pr + t_
                    M.append(f'{MF} {oacc(qt, nt)}, {b}, {CF(qt, ks) if ks < 8 else UF(qt, ks - 8)}, {"0" if ks == 0 and pr < 14 - NINIT else oacc(qt, nt)}')
        if opt.get('tchain', 1) and h >= opt.get('tch0', 6):
            keyed = []
            for i, x in enumerate(M):
                f = 16 * h + i // 2
                keyed.append((-1 if f < NC_F else (f - NC_F) // 24, x.split()[1], x))
            M2 = []
            for pr in sorted({kk[0] for kk in keyed}):
                seen = []
                for kk in keyed:
                    if kk[0] == pr and kk[1] not in seen: seen.append(kk[1])
                for d_ in seen: M2 += [kk[2] for kk in keyed if kk[0] == pr and kk[1] == d_]
            M = M2
        g0 = 32 * h
        st = []
        nxt_n = max(0, min(16, NF - 16 * (h + 1)))
        if h == 6:
            k('s_waitcnt lgkmcnt(0)')
            for x in M[:4]: k(x)
            M = M[4:]; g0 += 4
            if opt.get('wt2', 0):
                order = [8, 7, 15, 3, 4, 5, 0, 2, 1, 6, 11, 10, 9, 12, 13, 14]
                tab = sum(order.index(r) << (4 * r) for r in range(16))
                k(f's_mov_b32 s70, {hex(tab & 0xffffffff)}'); k(f's_mov_b32 s71, {hex(tab >> 32)}')
                k(f's_lshl_b32 s41, {srb}, 2'); k('s_lshr_b64 s[70:71], s[70:71], s41'); k('s_and_b32 s70, s70, 15')
                k('s_lshr_b32 s71, s70, 1'); k('s_lshl_b32 s71, s71, 14')
                k(f's_mov_b32 s41, {hex(WJ + WS_V + 6 * 16384)}'); k('s_bitcmp1_b32 s70, 0'); k(f's_cmov_b32 s41, {hex(WJ + 8 * 16384)}')
                k('s_add_u32 s71, s71, s41'); k(f's_mul_i32 s41, {shead}, {WHS}'); k('s_add_u32 s71, s71, s41')
                k('s_cmp_ge_u32 s70, 14'); k(f's_cmov_b32 s71, {hex(256 * MB)}')
                k(f's_lshl_b32 s41, {sw}, 12'); k('s_add_u32 s71, s71, s41')
                k(f'v_and_b32 {msk}, 31, v0'); k(f'v_lshlrev_b32 {msk}, 7, {msk}')
                k(f'buffer_load_dword {msk}, {msk}, s[28:31], s71 offen sc1')
            lg1, lg2 = k.newlabel('g'), k.newlabel('g')
            k(f's_cmp_eq_u32 {sMode}, 2'); k(f's_cbranch_scc1 {lg1}')
            for x in gelu_list(): k(x)
            k(f's_branch {lg2}')
            k.label(lg1)
            poll(t0, t1, t2)
            pl = [(f'buffer_load_dwordx4 {PML}, {l16}, s[28:31], s42 offen sc1', None)]
            for n in range(16):
                if n % 4 == 0: pl.append(S(f's_add_u32 s41, s32, {hex(n * 1024)}'))
                pl.append((f'buffer_load_dwordx4 a[{4 * n}:{4 * n + 3}], {l16}, s[28:31], s41 offen offset:{(n % 4) * 1024}' + opt.get('pmod2', ' sc1'), None))
            now, pl = split_loads(pl, 3); emit(now)
            emit(mix(gelu_list(), pl, 10))
            merge()
            k.label(lg2)
            if stamp: st_at(k, 9)
        if h % 2 == 0:
            m = h // 2
            PS = opt.get('psig', 0)
            if var == 1 and m == PS: k('s_waitcnt vmcnt(0) lgkmcnt(0)')
            elif m < 3: k('s_waitcnt vmcnt(16) lgkmcnt(0)')
            else: k.wait(f'tw{m}'); k('s_waitcnt lgkmcnt(0)')
            if m in (12, 13):
                lt_ = k.newlabel('tk')
                k(f's_cmp_lg_u32 {sw}, 0'); k(f's_cbranch_scc1 {lt_}')
                k('s_mov_b64 exec, 1')
                if m == 12:
                    k(f'v_mov_b32 {chk}, 1')
                    k(f'buffer_atomic_add {chk}, off, s[24:27], 0 offset:4 sc0 sc1')
                else:
                    k(f'v_mov_b32 {t0}, {hex(CSL)}')
                    k(f'ds_write_b32 {t0}, {chk}')
                    k('s_waitcnt lgkmcnt(0)')
                k('s_mov_b64 exec, -1')
                k.label(lt_)
            if m in SIGS:
                assert len(oready) - len(ostr) >= oend[int(SIGS[m][1][2:])]
                k.wait(SIGS[m][1])
            if m in CHK:
                k('v_mov_b32 %s, s68' % t0); k(f'v_mov_b32 {t1}, {CHK[m][0]}')
                poll(t0, t1, t2, off=64)
                xst['items'] += nb_loads(CHK[m][1], CHK[m][2])
            k('s_barrier')
            if var == 1 and m == PS:
                k(f's_lshl_b32 s41, {sAH}, 3'); k(f's_add_u32 s41, s41, {spair}'); k(f's_add_u32 s41, s41, {FL_P}'); k('s_lshl_b32 s41, s41, 7')
                signal('s41', t0)
            if m in SIGS:
                ls_ = k.newlabel('sig')
                k(f's_cmp_lg_u32 {sw}, 0'); k(f's_cbranch_scc1 {ls_}')
                k(f'v_mov_b32 {t0}, {SIGS[m][0]}')
                k('s_mov_b64 exec, 1')
                k(f'buffer_store_dword {t0}, off, s[20:23], s65 offset:64' + opt.get('flmod', ' sc1'))
                k('s_mov_b64 exec, -1')
                k.label(ls_)
            dm = dma_items(par) if m + 3 <= 13 else []
            dm = [[(x, f'tw{m + 3}') for x, _ in it] if isinstance(it, list) else (it[0], f'tw{m + 3}') for it in dm]
            st.append(dict(items=dm[:8], start=2, stride=7 if h != 6 else 6))
            st.append(dict(items=vreads(par, nxt_n), stride=1.5 if h != 6 else 1.25))
        else:
            k('s_waitcnt lgkmcnt(0)')
            st.append(dict(items=dm[8:], start=2, stride=7))
            st.append(dict(items=kreads(par, nxt_n) + rp_toggle(par), stride=1.5))
        if h % 2 == 1 and (h + 1) // 2 in CHK: xst['items'].append((f'buffer_load_dword {t2}, off, s[20:23], s68 offset:64 sc1', None))
        if h == 26:
            tk = [(f'v_mov_b32 {t0}, {hex(CSL)}', None), (f'ds_read_b32 {t0}, {t0}', None), (f'v_and_b32 {t1}, 15, v0', None)]
            tk2 = [(f'v_readfirstlane_b32 s33, {t0}', None), ('v_nop', None), ('v_nop', None), S('s_bfe_u32 s46, s33, 0x40001' if NJ == 2 else 's_and_b32 s46, s33, 15'), S(f's_add_u32 s40, s46, {FL_R}', 's_lshl_b32 s40, s40, 7'), S('s_mov_b32 s83, s33'),
                   (f'v_lshl_add_u32 {t0}, {t1}, 2, s40', None), (f'buffer_load_dword {t2}, {t0}, s[20:23], 0 offen offset:64 sc1', None)]
            st.insert(0, dict(items=tk + tk2, gate=lambda gi, p: p < 3 or gi >= 12))
        if xst['items']: st.append(xst)
        if h == 4: assert not xst['items']
        if pst['items']: st.append(pst)
        if cstr['items'] and (var != 1 or h >= 2): st.append(cstr)
        if h >= 6:
            od = len(oready) - len(ostr)
            ost['gate'] = lambda gi, p: g0 + gi >= oready[od + p]
            ost['by'] = {2 * (NC_F + 24 * u) - g0: oend[u - NSET] - od for u in range(NSET, 14) if 0 <= 2 * (NC_F + 24 * u) - g0 < len(M)}
            st.insert(1, ost)
            if NINIT and istr:
                assert NINIT == 1
                gs_ = 2 * (NC_F + 24 * 13)
                if g0 + len(M) > gs_ - 40:
                    assert len(oready) - len(ostr) >= oend[13 - NSET]
                    ist['gate'] = lambda gi, p: g0 + gi >= gs_ - 40
                    ist['by'] = {gs_ - g0 - 1: 999}
                    st.insert(1, ist)
        lst, left = pack(M, st)
        if opt.get('verbose'): print('tail half', h, 'overflow', left, 'pack', len(pst['items']), 'out', len(ostr))
        emit(lst)
        if h == 5:
            emit(pst['items'] + cstr['items']); del pst['items'][:]; del cstr['items'][:]
            assert not xst['items']
            if var == 2: k.label(lhj)
            else: k(f's_branch {lhj}')
    if stamp: st_at(k, 10)
    DG = opt.get('diag')
    if DG:
        k(f'v_mov_b32 {t0}, s96'); k(f'v_mov_b32 {t1}, s{84 + DG[0] if DG[0] >= 0 else 96}')
        k('s_lshl_b32 s80, s2, 2'); k(f's_add_u32 s80, s80, {hex(104 * MB)}')
        k(f'buffer_store_dword {t0}, off, s[28:31], s80 sc1'); k(f'buffer_store_dword {t1}, off, s[28:31], s80 offset:1024 sc1')
    emit(ostr)
    if opt.get('tts'):
        k('s_memtime s[80:81]'); k('s_waitcnt lgkmcnt(0)'); k(f'v_writelane_b32 {vS}, s80, 28')
        k(f'v_lshlrev_b32 {t0}, 2, v0'); k('s_lshl_b32 s80, s2, 10'); k(f's_add_u32 s80, s80, {hex(103 * MB)}')
        k(f'buffer_store_dword {vS}, {t0}, s[28:31], s80 offen')
    if INRED:
        ldone = k.newlabel('r')
        if stamp: st_at(k, 4)
        k(f's_cmp_ge_u32 s33, {448 // NJ}'); k(f's_cbranch_scc1 {ldone}')
        r0_ = Reg('v', 3)
        k(f'v_and_b32 {lane}, 63, v0')
        k(f'v_mov_b32 {r0_}, {t1}')
        if NJ == 2: k('s_and_b32 s45, s33, 1')
        k(f's_lshr_b32 s33, s33, {5 if NJ == 2 else 4}')
        k(f's_mov_b32 s41, {len(NBP)}')
        for i in range(len(NBP) - 2, -1, -1):
            k(f's_cmp_lt_u32 s33, {NBP[i][2]}'); k(f's_cmov_b32 s41, {i + 1}')
        if NJ == 2:
            k(f'v_xor_b32 {t1}, s45, {t1}'); k(f'v_and_b32 {t1}, 1, {t1}'); k(f'v_xor_b32 {t1}, 1, {t1}')
            k(f'v_mul_u32_u24 {t1}, s41, {t1}')
            k('s_mul_i32 s40, s45, 7'); k('s_add_u32 s33, s33, s40')
        else: k(f'v_mov_b32 {t1}, s41')
        k('s_mul_i32 s35, s46, 14'); k('s_add_u32 s35, s35, s33'); k('s_lshl_b32 s35, s35, 16')
        k(f's_lshl_b32 s40, {sw}, 11'); k('s_add_u32 s35, s35, s40'); k(f's_add_u32 s35, s35, {hex(WS_OP)}')
        k('s_lshl_b32 s46, s46, 3'); k(f's_lshl_b32 s40, {sw}, 1'); k('s_add_u32 s46, s46, s40')
        k('s_mul_i32 s34, s46, 14'); k('s_add_u32 s34, s34, s33'); k('s_lshl_b32 s34, s34, 10')
        poll(t0, t1, t2, off=64)
        RA = [l16, Reg('v', 6)]
        TT = Reg('v', 8, 4); GG = [Reg('v', 12 + j % 2) for j in range(NJ)]; VO = [Reg('v', 16 + j % 2) for j in range(NJ)]
        ACC = [Reg('v', 20 + 8 * j, 8) for j in range(NJ)]; XP = [Reg('v', 52 + 4 * j, 4) for j in range(NJ)]
        BK = [[Reg('v', 128 + (i * NJ + j) * 4, 4) for j in range(NJ)] for i in range(8)]
        NS = 4 * NJ
        def slot_loads(n):
            i, hf = n % 8, n // 8
            k(f's_add_u32 s41, s35, {i * 8192 + hf * 7 * 0x10000}')
            for j in range(2): k(f'buffer_load_dwordx4 {BK[i][2 * hf + j]}, {l16}, s[28:31], s41 offen offset:{j * 1024} sc1')
        for n in range(NS): slot_loads(n)
        k(f'v_add_u32 {RA[1]}, {14 * 1024}, {l16}')
        for j in range(NJ):
            if j % 2 == 0: k(f's_add_u32 s40, s34, {hex(WS_X1 + (j // 2) * 7 * 1024)}')
            k(f'buffer_load_dwordx4 {XP[j]}, {RA[j % 2]}, s[28:31], s40 offen sc1')
        k(f'v_bfe_u32 {TT[0]}, {lane}, 4, 1'); k(f'v_lshlrev_b32 {TT[0]}, 5, {TT[0]}')
        k(f'v_lshrrev_b32 {TT[1]}, 5, {lane}'); k(f'v_lshl_add_u32 {TT[0]}, {TT[1]}, 4, {TT[0]}')
        k(f's_mov_b32 s47, {hex(WS_G)}'); k('s_lshl_b32 s43, s33, 6')
        for j in range(2):
            k(f's_add_u32 s41, s46, {j}'); k('s_lshl_b32 s41, s41, 4')
            k(f'v_add_u32 {TT[1]}, s41, {r0_}')
            k(f'v_lshlrev_b32 {TT[2]}, 2, {TT[1]}')
            k(f'buffer_load_dword {GG[j]}, {TT[2]}, s[28:31], s47 offen sc1')
            k(f'v_mul_u32_u24 {VO[j]}, 896, {TT[1]}')
            k(f'v_add3_u32 {VO[j]}, {VO[j]}, {TT[0]}, s43')
        k('s_mov_b32 s38, 0'); k('s_mov_b32 s39, 0xffff8000')
        lrd, lok = k.newlabel('r'), k.newlabel('r')
        k.label(lrd)
        k('s_waitcnt vmcnt(0)')
        k('s_mov_b32 s36, 0')
        for i in range(NS):
            ln_ = k.newlabel('r')
            k(f'v_and_b32 {TT[3]}, {BK[i % 8][i // 8 * 2][0]}, {BK[i % 8][i // 8 * 2 + 1][0]}')
            k(f'v_and_b32 {TT[3]}, 1, {TT[3]}')
            k(f'v_cmp_eq_u32 vcc, 0, {TT[3]}')
            k(f's_cbranch_vccz {ln_}')
            k('s_cmp_lg_u32 s36, 0'); lz_ = k.newlabel('r'); k(f's_cbranch_scc1 {lz_}')
            k(f's_sleep {opt.get("rsleep", 3)}')
            k.label(lz_)
            slot_loads(i)
            k('s_mov_b32 s36, 1')
            k.label(ln_)
        k('s_cmp_eq_u32 s36, 0'); k(f's_cbranch_scc1 {lok}')
        k('s_add_u32 s38, s38, 1'); k('s_cmp_lt_u32 s38, 0x40000'); k(f's_cbranch_scc1 {lrd}')
        k('s_waitcnt vmcnt(0)')
        k.label(lok)
        if stamp and opt.get('rst'): st_at(k, 0)
        srd(k, 8, 4, 2048 * 896)
        for i in range(8):
            for j in range(NJ):
                for q in range(4):
                    tp = TT.sub((q % 2) * 2, 2) if i else ACC[j].sub(2 * q, 2)
                    k(f'v_lshlrev_b32 {tp[0]}, 16, {BK[i][j][q]}' if q else f'v_lshl_add_u32 {tp[0]}, {BK[i][j][0]}, 16, s39')
                    k(f'v_and_b32 {tp[1]}, 0xffff0000, {BK[i][j][q]}')
                    if i: k(f'v_pk_add_f32 {ACC[j].sub(2 * q, 2)}, {ACC[j].sub(2 * q, 2)}, {tp}')
        if stamp and opt.get('rst'): st_at(k, 1)
        for j in range(NJ):
            if j < 2: k(f'v_sub_f32 {GG[j]}, 1.0, {GG[j]}')
            for q in range(4):
                tp = TT.sub((q % 2) * 2, 2)
                k(f'v_lshlrev_b32 {tp[0]}, 16, {XP[j][q]}')
                k(f'v_and_b32 {tp[1]}, 0xffff0000, {XP[j][q]}')
                k(f'v_fma_f32 {ACC[j][2 * q]}, {tp[0]}, {GG[j]}, {ACC[j][2 * q]}')
                k(f'v_fma_f32 {ACC[j][2 * q + 1]}, {tp[1]}, {GG[j]}, {ACC[j][2 * q + 1]}')
            for q in range(4): k(f'v_cvt_pk_bf16_f32 {XP[j][q]}, {ACC[j][2 * q]}, {ACC[j][2 * q + 1]}')
            k(f'v_permlane16_swap_b32 {XP[j][0]}, {XP[j][2]}')
            k(f'v_permlane16_swap_b32 {XP[j][1]}, {XP[j][3]}')
            k(f'buffer_store_dwordx4 {XP[j]}, {VO[j]}, s[8:11], 0 offen offset:{(j // 2) * 448}' + opt.get('outmod', ''))
        k.label(ldone)
    if DG:
        le_, lsp = k.newlabel('dg'), k.newlabel('dg')
        k('s_cmp_lg_u32 s83, 255'); k(f's_cbranch_scc1 {le_}')
        k('s_sleep 32')
        k('v_and_b32 v1, 63, v0'); k('v_lshlrev_b32 v1, 4, v1')
        k(f's_mov_b32 s80, {hex(104 * MB)}')
        k('buffer_load_dwordx4 v[4:7], v1, s[28:31], s80 offen sc1'); k('buffer_load_dwordx4 v[8:11], v1, s[28:31], s80 offen offset:1024 sc1')
        for i in range(4, 12): k(f'v_subrev_u32 v{i}, s96, v{i}')
        mn, mx = ('v_min_i32', DG[2] if len(DG) > 2 else 'v_max_i32')
        k(f'{mn} v4, v4, v5'); k(f'{mn} v6, v6, v7'); k(f'{mn} v4, v4, v6')
        k(f'{mx} v8, v8, v9'); k(f'{mx} v10, v10, v11'); k(f'{mx} v8, v8, v10')
        k('s_brev_b32 s40, -2'); k('s_brev_b32 s41, 1' if 'max' in mx else 's_brev_b32 s41, -2')
        for l_ in range(64):
            k(f'v_readlane_b32 s42, v4, {l_}'); k(f'v_readlane_b32 s43, v8, {l_}')
            k('s_min_i32 s40, s40, s42'); k(f's_{"max" if "max" in mx else "min"}_i32 s41, s41, s43')
        k('s_sub_u32 s41, s41, s40'); k(f's_mul_i32 s41, s41, {DG[1]}')
        k('s_min_u32 s41, s41, 100000')
        k('s_add_u32 s41, s41, 12000'); k('s_add_u32 s41, s41, s40'); k('s_add_u32 s41, s41, s96')
        k.label(lsp)
        k('s_memrealtime s[80:81]'); k('s_waitcnt lgkmcnt(0)')
        k('s_sub_u32 s80, s80, s41'); k('s_cmp_lt_i32 s80, 0'); k(f's_cbranch_scc1 {lsp}')
        k.label(le_)
    elif stamp and opt.get('dbgout'):
        k('s_waitcnt vmcnt(0)')
        st_at(k, 11)
        k('s_mov_b64 exec, 1')
        for w_, (sr, neg) in enumerate([(96, 1), (96, 0), (84, 0), (85, 1), (85, 0), (89, 1), (89, 0), (91, 1), (91, 0), (88, 1), (88, 0), (95, 0)]):
            k(f's_and_b32 s81, s{sr}, 0xffffff')
            if neg: k('s_sub_u32 s81, 0x1000000, s81')
            k(f'v_mov_b32 {t0}, s81')
            k(f'buffer_atomic_umax {t0}, off, s[24:27], 0 offset:{8 + 4 * w_} sc1')
    elif stamp: st_end(k, 28, t0, t1)
    k('s_endpgm')
    k.label(lfix)
    for qt, d in ((0, t0), (1, t1)):
        k(f'v_max_f32 {d}, 0, {PML[2 * qt]}')
        k(f'v_sub_f32 {PML[2 * qt]}, {PML[2 * qt]}, {d}')
        k(f'v_exp_f32 {d}, -{d}')
    for dt in range(16):
        for qt, d in ((0, t0), (1, t1)):
            for j in range(4): k(f'v_mul_f32 {O(dt, qt)[j]}, {O(dt, qt)[j]}, {d}')
    for qt, d in ((0, t0), (1, t1)): k(f'v_mul_f32 {L[qt][0]}, {L[qt][0]}, {d}')
    k(f's_branch {lfr}')
    k.label(f'{name}_end')
    k('s_endpgm')
    k.finalize()
    return k


if __name__ == '__main__':
    k = gen_mega(stamp=True, opt=dict(verbose=1))
    print(k.stats(), k.maxregs())
```

```python
import sys
from common import *
import mega, k2b
head = open('gated_mix__compressed_kv_cla__mixer_s_mlp__prompt.s.ref').read().split('; Override')[0]
def gen_pre(mode):
    k = Kernel('pre_kernel')
    if mode >= 2:
        k('s_cmp_ge_u32 s2, 256'); k('s_cbranch_scc1 pre_kernel_end')
        k('s_load_dwordx2 s[4:5], s[0:1], 8'); k('s_load_dwordx4 s[8:11], s[0:1], 24')
        k('s_getpc_b64 s[40:41]'); k.label('pre_kernel_pc')
        k('s_add_u32 s40, s40, mega_kernel-pre_kernel_pc'); k('s_addc_u32 s41, s41, 0')
        k('s_lshr_b32 s33, s2, 3')
        k('s_lshl_b32 s42, s33, 5'); k('v_and_b32 v1, 31, v0'); k('v_add_u32 v1, s42, v1'); k('v_lshlrev_b32 v1, 7, v1')
        k('v_min_u32 v1, mega_kernel_end-mega_kernel, v1')
        k('global_load_dword v10, v1, s[40:41]')
        k('s_waitcnt lgkmcnt(0)')
        srd(k, 12, 4, 4 * MB)
        k('v_lshrrev_b32 v2, 2, v0'); k('s_lshl_b32 s42, s33, 6'); k('v_add_u32 v2, s42, v2'); k('v_lshlrev_b32 v2, 11, v2')
        k('v_and_b32 v3, 3, v0'); k('v_lshl_add_u32 v2, v3, 7, v2')
        k('buffer_load_dword v11, v2, s[12:15], 0 offen')
        k('s_cmp_ge_u32 s33, 16'); k('s_cselect_b32 s8, s10, s8'); k('s_cselect_b32 s9, s11, s9')
        srd(k, 16, 8, 8 * MB)
        k('v_bfe_u32 v4, v0, 3, 4'); k('s_and_b32 s42, s33, 15'); k('s_lshl_b32 s42, s42, 4'); k('v_add_u32 v4, s42, v4'); k('v_lshlrev_b32 v4, 13, v4')
        k('v_and_b32 v5, 7, v0'); k('v_lshl_add_u32 v4, v5, 7, v4')
        k('s_and_b32 s42, s2, 7'); k('s_lshl_b32 s42, s42, 10')
        k('buffer_load_dword v12, v4, s[16:19], s42 offen')
        if mode == 3: k('s_waitcnt vmcnt(0)')
        k.label('pre_kernel_end')
    else: k('v_mov_b32 v1, 0')
    k('s_endpgm')
    k.finalize()
    return k
def build(fn, o={}, stamp=False):
    import common; common.RT[0] = bool(o.get('rt'))
    ks = [mega.gen_mega(stamp=stamp, opt=o), k2b.gen_red()]
    L = [('mega_kernel', 256, 256, mega.MEGA_LDS), ('red_kernel', 256, 448, 0)]
    if o.get('inred', 1): ks = ks[:1]; L = L[:1]
    if o.get('pre'):
        ks = [gen_pre(o['pre'])] + ks; L = [('pre_kernel', 256, 256, 0)] + L
    s = write_file(fn, L, ks, head=head)
    if o.get('single'):
        N = 'gated_mix__compressed_kv_cla__mixer_s_mlp__prompt_kernel'
        s = s.replace('; @launch kernel=mega_kernel grid', '; @launch grid')
        s = s.replace('mega_kernel_', 'Lk_').replace('mega_kernel', N)
        open(fn, 'w').write(s)
    print(fn, len(s), 'bytes')
if __name__ == '__main__':
    import json
    for a in sys.argv[1:]:
        nm, o = a.split('=', 1)
        try: build(nm + '.s', eval('dict(' + o + ')'), stamp=not nm.startswith('v'))
        except AssertionError as e: print(nm, 'FAILED', e)
```
